```python
import torch

def _softmax(x, axis=-1):
    return torch.softmax(x, dim=axis)
def _gelu(x):
    return torch.nn.functional.gelu(x, approximate="tanh")
def _silu(x):
    return torch.nn.functional.silu(x)
def _sigmoid(x):
    return torch.sigmoid(x)
def _layernorm(x, axis=-1, eps=1e-5):
    m = x.mean(dim=axis, keepdim=True)
    v = x.var(dim=axis, keepdim=True, unbiased=False)
    return (x - m) / torch.sqrt(v + eps)
def _scatter_add(tgt, idx, src, axis=0):
    return tgt.clone().index_add_(axis, idx, src)
def _segment_sum(src, seg, n):
    out = torch.zeros((n,) + src.shape[1:], dtype=src.dtype)
    return out.index_add_(0, seg, src)
def _pad(x, pw):
    flat = tuple(v for pair in reversed(pw) for v in pair)
    return torch.nn.functional.pad(x, flat)

kernel_name = 'standalone__cross_network_dcn_v2__recsys'

def setup_inputs():

    _w = (lambda a: (lambda t: t.to(torch.bfloat16) if t.is_floating_point() else t)(torch.as_tensor(a)))
    B, F, D, L = 16384, 26, 16, 6
    Din = min(F * D, 512)
    R = max(Din // 4, 2)
    sc = Din ** -0.5
    return {
        "x0": _w((lambda *s: torch.randn(*s, dtype=torch.bfloat16) * 0.05)(B, Din)),
        "U":  _w((lambda *s: torch.randn(*s, dtype=torch.bfloat16) * 1.6)(L, Din, R) * sc),
        "V":  _w((lambda *s: torch.randn(*s, dtype=torch.bfloat16) * 1.6)(L, R, Din) * sc),
        "bs": _w((lambda *s: torch.randn(*s, dtype=torch.bfloat16) * 0.05)(L, Din)),
    }

def reference(x0, U, V, bs):
    x = x0
    for l in range(U.shape[0]):
        h = torch.einsum('rd,bd->br', V[l], x)
        h = torch.einsum('dr,br->bd', U[l], h)
        x = x0 * (h + bs[l]) + x
    return x
```

```python
import re

def rng(p, a, n=1):
    return [f"{p}{i}" for i in range(a, a + n)]

def R(p, a, n=1):
    return f"{p}{a}" if n == 1 else f"{p}[{a}:{a+n-1}]"

class Ins:
    __slots__ = ("t", "kind", "rd", "wr", "tag", "need", "srcC", "passes", "cost", "note")
    def __init__(self, t, kind, rd=(), wr=(), tag=None, need=(), srcC=(), passes=0, cost=4, note=""):
        self.t = t; self.kind = kind
        self.rd = set(rd); self.wr = set(wr)
        self.tag = tag; self.need = list(need)
        self.srcC = set(srcC); self.passes = passes; self.cost = cost; self.note = note
    def __repr__(self): return self.t

def mfma32(d, a, b, c=None):
    D = R(d[0], d[1], 16); A = R(a[0], a[1], 4); B = R(b[0], b[1], 4)
    if c is None: C = D; sc = rng(d[0], d[1], 16)
    elif c == 0: C = "0"; sc = []
    else: C = R(c[0], c[1], 16); sc = rng(c[0], c[1], 16)
    return Ins(f"v_mfma_f32_32x32x16_bf16 {D}, {A}, {B}, {C}", "mfma",
               rd=rng(a[0], a[1], 4) + rng(b[0], b[1], 4) + sc, wr=rng(d[0], d[1], 16),
               srcC=sc, passes=8, cost=8)

def mfma16(d, a, b, c=None):
    D = R(d[0], d[1], 4); A = R(a[0], a[1], 4); B = R(b[0], b[1], 4)
    if c is None: C = D; sc = rng(d[0], d[1], 4)
    elif c == 0: C = "0"; sc = []
    else: C = R(c[0], c[1], 4); sc = rng(c[0], c[1], 4)
    return Ins(f"v_mfma_f32_16x16x32_bf16 {D}, {A}, {B}, {C}", "mfma",
               rd=rng(a[0], a[1], 4) + rng(b[0], b[1], 4) + sc, wr=rng(d[0], d[1], 4),
               srcC=sc, passes=4, cost=8)

def valu(t, rd, wr, cost=4):
    return Ins(t, "valu", rd=rd, wr=wr, cost=cost)

def salu(t, rd=(), wr=()):
    return Ins(t, "salu", rd=rd, wr=wr)

def ds_read128(d, addr, off, tag=None):
    return Ins(f"ds_read_b128 {R(d[0], d[1], 4)}, v{addr} offset:{off}", "dsr",
               rd=[f"v{addr}"], wr=rng(d[0], d[1], 4), tag=tag)

def ds_write128(addr, s, off, tag=None):
    return Ins(f"ds_write_b128 v{addr}, {R(s[0], s[1], 4)} offset:{off}", "dsw",
               rd=[f"v{addr}"] + rng(s[0], s[1], 4), tag=tag, cost=8)

def ds_write64(addr, s, off, tag=None):
    return Ins(f"ds_write_b64 v{addr}, {R(s[0], s[1], 2)} offset:{off}", "dsw",
               rd=[f"v{addr}"] + rng(s[0], s[1], 2), tag=tag, cost=8)

def buf_load4(d, voff, srd, soff, imm, flags="", tag=None):
    so = soff if isinstance(soff, str) else str(soff)
    rd = [f"v{voff}"] + rng("s", srd, 4) + ([so] if so.startswith("s") else [])
    o = f" offset:{imm}" if imm else ""
    return Ins(f"buffer_load_dwordx4 {R(d[0], d[1], 4)}, v{voff}, s[{srd}:{srd+3}], {so} offen{o}{flags}", "vml",
               rd=rd, wr=rng(d[0], d[1], 4), tag=tag)

def buf_load_lds4(voff, srd, soff, imm, flags="", tag=None):
    so = soff if isinstance(soff, str) else str(soff)
    rd = [f"v{voff}", "m0"] + rng("s", srd, 4) + ([so] if so.startswith("s") else [])
    o = f" offset:{imm}" if imm else ""
    return Ins(f"buffer_load_dwordx4 v{voff}, s[{srd}:{srd+3}], {so} offen{o}{flags} lds", "vml",
               rd=rd, tag=tag)

def buf_store4(s, voff, srd, soff, imm, flags="", tag=None):
    so = soff if isinstance(soff, str) else str(soff)
    rd = [f"v{voff}"] + rng("s", srd, 4) + ([so] if so.startswith("s") else []) + rng(s[0], s[1], 4)
    o = f" offset:{imm}" if imm else ""
    return Ins(f"buffer_store_dwordx4 {R(s[0], s[1], 4)}, v{voff}, s[{srd}:{srd+3}], {so} offen{o}{flags}", "vms",
               rd=rd, tag=tag)

def barrier(need=()):
    return Ins("s_barrier", "bar", need=need)

def raw(t, kind="raw", **kw):
    return Ins(t, kind, **kw)

def insert_waits(prog, lg_init=None, vm_init=None):
    out = []
    lg = []
    vm = []
    maxlg = maxvm = 0
    for I in prog:
        if I.kind == "waitall":
            out.append(Ins("s_waitcnt vmcnt(0) lgkmcnt(0)", "wait")); lg = []; vm = []
            continue
        if I.kind == "flushstate":
            lg = []; vm = []
            continue
        touch = I.rd | I.wr
        def scan(q):
            last = -1
            for i, (regs, tag) in enumerate(q):
                if (regs & touch) or (tag is not None and tag in I.need):
                    last = i
            return last
        li = scan(lg); vi = scan(vm)
        parts = []
        if vi >= 0:
            n = len(vm) - 1 - vi
            assert n <= 63
            parts.append(f"vmcnt({n})"); vm = vm[vi + 1:]
        if li >= 0:
            n = len(lg) - 1 - li
            if n > 15:
                n = 15; li = len(lg) - 1 - 15
            parts.append(f"lgkmcnt({n})"); lg = lg[li + 1:]
        if parts:
            out.append(Ins("s_waitcnt " + " ".join(parts), "wait"))
        out.append(I)
        if I.kind in ("dsr", "dsw"):
            lg.append((set(I.wr), I.tag))
            if len(lg) > 15:
                out.pop()
                out.append(Ins("s_waitcnt lgkmcnt(14)", "wait"))
                out.append(I)
                lg = lg[len(lg) - 15:]
            maxlg = max(maxlg, len(lg))
        elif I.kind in ("vml", "vms"):
            vm.append((set(I.wr), I.tag))
            if len(vm) > 63:
                out.pop()
                out.append(Ins("s_waitcnt vmcnt(62)", "wait"))
                out.append(I)
                vm = vm[len(vm) - 63:]
            maxvm = max(maxvm, len(vm))
    return out, dict(maxlg=maxlg, maxvm=maxvm)

MF_TO_USE = {2: 5, 4: 8, 8: 12, 16: 20}
MF_C_WAR = {2: 1, 4: 3, 8: 7, 16: 15}

def states(I):
    if I.kind == "nop":
        m = re.match(r"s_nop (\d+)", I.t); return int(m.group(1)) + 1
    if I.kind in ("label", "comment"): return 0
    return 1

def insert_hazard_nops(prog):
    out = []
    pos = 0
    mf_w = {}
    mf_c = {}
    valu_w = {}
    valu_ws = {}
    st_data = {}
    m0_w = -100
    nnop = 0
    for I in prog:
        need = 0
        def req(p, n):
            nonlocal need
            d = pos - p - 1
            if d < n: need = max(need, n - d)
        if I.kind == "mfma":
            for r in I.rd:
                if r in valu_w: req(valu_w[r], 2)
                if r in mf_w:
                    p, ps, dst = mf_w[r]
                    if r in I.srcC:
                        if dst == frozenset(I.srcC) and ps == I.passes: pass
                        else: req(p, {2: 4, 4: 6, 8: 10, 16: 18}[ps])
                    if r not in I.srcC or False: req(p, MF_TO_USE[ps])
            for r in I.wr:
                if r in mf_w and r not in I.srcC:
                    p, ps, dst = mf_w[r]
                    req(p, {2: 4, 4: 6, 8: 10, 16: 18}[ps])
        elif I.kind in ("valu", "dsr", "dsw", "vml", "vms"):
            for r in (I.rd | I.wr):
                if r in mf_w:
                    p, ps, dst = mf_w[r]; req(p, MF_TO_USE[ps])
            if I.kind == "valu" or I.kind in ("dsr", "vml"):
                for r in I.wr:
                    if r in mf_c:
                        p, ps = mf_c[r]; req(p, MF_C_WAR[ps])
            if I.kind == "valu":
                for r in I.wr:
                    if r in st_data: req(st_data[r], 2)
                for r in I.rd:
                    if r in valu_ws: req(valu_ws[r], 2)
                if "readfirstlane" in I.t or "readlane" in I.t:
                    for r in I.rd:
                        if r in valu_w: req(valu_w[r], 1)
                if "permlane" in I.t:
                    for r in (I.rd | I.wr):
                        if r in valu_w: req(valu_w[r], 2)
            if I.kind in ("vml", "vms"):
                for r in I.rd:
                    if r in valu_ws: req(valu_ws[r], 5)
                if "m0" in I.rd: req(m0_w, 1)
            if I.kind in ("dsr", "vml"):
                for r in I.wr:
                    if r in st_data: req(st_data[r], 1)
        if need:
            n = need
            while n > 0:
                k = min(n, 16)
                out.append(Ins(f"s_nop {k-1}", "nop")); pos += k; n -= k; nnop += 1
        out.append(I)
        if I.kind == "mfma":
            for r in I.wr: mf_w[r] = (pos, I.passes, frozenset(I.wr))
            for r in I.srcC: mf_c[r] = (pos, I.passes)
        elif I.kind == "valu":
            for r in I.wr:
                if r.startswith("s") or r == "vcc": valu_ws[r] = pos
                else: valu_w[r] = pos
                mf_w.pop(r, None)
        elif I.kind in ("dsr", "vml"):
            for r in I.wr: mf_w.pop(r, None)
        if I.kind == "vms":
            for r in I.rd:
                if r[0] in "va": st_data[r] = pos
        if I.kind == "salu" and "m0" in I.wr: m0_w = pos
        pos += states(I)
    return out, nnop

def emit(prog):
    lines = []
    for I in prog:
        if I.kind == "label": lines.append(I.t)
        elif I.kind == "comment": lines.append("; " + I.t)
        else: lines.append("  " + I.t)
    return "\n".join(lines)

class Slots:
    def __init__(self):
        self.mf = []
        self.fill = {}
        self.pre = {}
    def add(self, ins):
        self.mf.append(ins); return len(self.mf) - 1
    def at(self, slot, ins):
        self.fill.setdefault(slot, []).append(ins)
    def before(self, slot, ins):
        self.pre.setdefault(slot, []).append(ins)
    def load(self, slot):
        return sum(i.cost for i in self.fill.get(slot, [])) + sum(i.cost for i in self.pre.get(slot, []))
    def spread(self, ops, start, cap=20, maxslot=None):
        s = start
        for o in ops:
            while self.load(s) + o.cost > cap: s += 1
            self.at(s, o)
        return s
    def linear(self):
        out = []
        n = len(self.mf)
        last = max([n - 1] + list(self.fill) + list(self.pre))
        first = min([0] + list(self.fill) + list(self.pre))
        for s in range(first, last + 1):
            out += self.pre.get(s, [])
            if 0 <= s < n: out.append(self.mf[s])
            out += self.fill.get(s, [])
        return out
```

```python
import sys
from core import *

NL = 6
XB = 0
HB = 52 * 1024
LDS_BYTES = HB + 14 * 1024
LAYER_PK = 182 * 1024
ROLE_PK = 47 * 1024
PK_BYTES = NL * LAYER_PK
X_BYTES = 16384 * 832
W_BYTES = 6 * 86528
B_BYTES = 6 * 832

S_X0, S_U, S_V, S_BS, S_OUT, S_DBG, S_WS = 4, 6, 8, 10, 12, 14, 16
SRD_X, SRD_O, SRD_W, SRD_V, SRD_U, SRD_B, SRD_D = 20, 24, 28, 32, 36, 40, 44
S_WAVE = 48
S_SO = 49
S_T0, S_T1, S_T2, S_T3 = 50, 51, 52, 53
S_B1 = 54
V_LANE, V_L16, V_HR, V_XG, V_W, V_XW, V_HW, V_X16, V_OR = 0, 1, 2, 3, 4, 5, 6, 7, 0

class Role:
    def __init__(self, name):
        self.name = name
        self.M = name == "M"
        if self.M:
            self.nj = 3
            self.nV = 26
            self.S0 = 8
            self.X0 = 104
            self.ACC = 200
        else:
            self.nj = 4
            self.nV = 13
            self.S0 = 8
            self.X0 = 136
            self.ACC = 216
        self.nU = 7 * self.nj
        self.nW = self.nV + self.nU
        self.POOL = 36
        self.XST, self.NXST = 144, 6
        self.HFR = 168
        self.X0A = 196
        self.TM = [232, 240]
        self.TC = [248, 252]
    def sreg(self, u): return self.S0 + 16 * u
    def x0reg(self, u):
        if self.M or u < 5: return ("v", self.X0 + 16 * u)
        return ("a", self.X0A + 16 * (u - 5))

def srd(dst, ptr, nbytes):
    return [salu(f"s_mov_b32 s{dst}, s{ptr}", rd=[f"s{ptr}"], wr=[f"s{dst}"]),
            salu(f"s_mov_b32 s{dst+1}, s{ptr+1}", rd=[f"s{ptr+1}"], wr=[f"s{dst+1}"]),
            salu(f"s_mov_b32 s{dst+2}, {nbytes}", wr=[f"s{dst+2}"]),
            salu(f"s_mov_b32 s{dst+3}, 0x20000", wr=[f"s{dst+3}"])]

def V(t, rd, wr): return valu(t, rd, wr)

def load_ptrs():
    return [raw("s_load_dwordx4 s[4:7], s[0:1], 0"), raw("s_load_dwordx4 s[8:11], s[0:1], 16"),
            raw("s_load_dwordx4 s[12:15], s[0:1], 32"), raw("s_load_dwordx2 s[16:17], s[0:1], 48")]

def epilogue_ops(ro, u, l, cfg):
    b, jj = divmod(u, ro.nj)
    ops = []
    sreg = ro.sreg(u); xp, xr = ro.x0reg(u)
    for h in range(2):
        tm = ro.TM[h]; tc = ro.TC[h]
        for i in range(8):
            if xp == "a":
                ops.append(V(f"v_accvgpr_read_b32 v{tm+i}, a{xr+8*h+i}", [f"a{xr+8*h+i}"], [f"v{tm+i}"]))
                ops.append(V(f"v_mul_f32 v{tm+i}, v{tm+i}, v{sreg+8*h+i}", [f"v{tm+i}", f"v{sreg+8*h+i}"], [f"v{tm+i}"]))
            else:
                ops.append(V(f"v_mul_f32 v{tm+i}, v{xr+8*h+i}, v{sreg+8*h+i}", [f"v{xr+8*h+i}", f"v{sreg+8*h+i}"], [f"v{tm+i}"]))
            if i % 2 == 1:
                ops.append(V(f"v_cvt_pk_bf16_f32 v{tc+i//2}, v{tm+i-1}, v{tm+i}", [f"v{tm+i-1}", f"v{tm+i}"], [f"v{tc+i//2}"]))
        if l < NL - 1:
            o = ds_write128(V_XW, ("v", tc), XB + (b * 26 + 2 * jj + h) * 1024, tag=("xw", l + 1, b, jj, h))
            o.note = ("W", ("x", b), l + 1)
        else:
            o = buf_store4(("v", tc), V_XG, SRD_O, f"s{S_B1}" if b else 0, 0, tag=("st", u, h))
            o = Ins(f"buffer_store_dwordx4 v[{tc}:{tc+3}], v{V_XW}, s[{SRD_O}:{SRD_O+3}], " +
                    (f"s{S_B1}" if b else "0") + f" offen offset:{jj*64+h*32}{cfg.get('stflags','')}", "vms",
                    rd=[f"v{V_XW}"] + rng("v", tc, 4) + rng("s", SRD_O, 4), tag=("st", u, h))
        ops.append(o)
    return ops

def build_main(ro, cfg):
    S = Slots()
    M = ro.M
    nj = ro.nj
    lay = []
    wuse = []
    poolreg = lambda n: ("a", 4 * (n % ro.POOL))
    xcnt = [0]
    xreads = []
    for l in range(NL):
        d = {}
        nb = l * ro.nW
        first = {}; last = {}
        for b in range(2):
            d[("g1s", b)] = len(S.mf)
            if M:
                for k in range(26):
                    xs = ("a", ro.XST + 4 * (xcnt[0] % ro.NXST)); xcnt[0] += 1
                    rdop = ds_read128(xs, V_L16, XB + (b * 26 + k) * 1024)
                    rdop.note = ("R", ("x", b), l)
                    sl = S.add(mfma32(("v", ro.ACC + 16 * b), poolreg(nb + k), xs, c=(0 if k == 0 else None)))
                    xreads.append((sl, rdop))
                    first.setdefault(k, sl); last[k] = sl
            else:
                for uu in range(13):
                    for be in range(2):
                        xs = ("a", ro.XST + 4 * (xcnt[0] % ro.NXST)); xcnt[0] += 1
                        rdop = ds_read128(xs, V_X16, XB + b * 26624 + uu * 2048 + be * 256)
                        rdop.note = ("R", ("x", b), l)
                        sl = S.add(mfma16(("v", ro.ACC + 8 * b + 4 * be), poolreg(nb + uu), xs, c=(0 if uu == 0 else None)))
                        xreads.append((sl, rdop))
                        first.setdefault(uu, sl); last[uu] = sl
            d[("g1e", b)] = len(S.mf) - 1
        for b in range(2):
            d[("g2s", b)] = len(S.mf)
            for jj in range(nj):
                u = b * nj + jj
                for kk in range(7):
                    i = ro.nV + jj * 7 + kk
                    sl = S.add(mfma32(("v", ro.sreg(u)), poolreg(nb + i), ("a", ro.HFR + 4 * kk)))
                    first.setdefault(i, sl); last[i] = sl
                d[("ue", u)] = sl
            d[("g2e", b)] = len(S.mf) - 1
        for i in range(ro.nW): wuse.append((first[i], last[i]))
        lay.append(d)
    total = len(S.mf)
    pre_loads = []
    nW = len(wuse)
    pace = cfg.get("pace_M" if M else "pace_R", 2.0)
    prev = -1e9
    minslack = 1e9
    for n in range(nW):
        l, i = divmod(n, ro.nW)
        off = l * LAYER_PK + i * 1024
        ops = []
        if i % 4 == 0 or n == 0:
            ops.append(salu(f"s_mov_b32 s{S_SO}, {off - (i % 4) * 1024}", wr=[f"s{S_SO}"]))
        ops.append(buf_load4(poolreg(n), V_W, SRD_W, f"s{S_SO}", (i % 4) * 1024, flags=cfg.get("wflags", "")))
        if n < ro.POOL:
            pre_loads += ops
            continue
        earliest = wuse[n - ro.POOL][1]
        sl = int(max(earliest, prev + pace))
        prev = max(earliest, prev + pace)
        minslack = min(minslack, wuse[n][0] - sl)
        for o in ops: S.at(sl, o)
    S.minslack = minslack
    DX = cfg.get("dx", 4) if M else cfg.get("dx_R", 4)
    S.xreads = xreads
    bars = []
    for l in range(NL):
        d = lay[l]
        if M:
            bx1 = d[("g1s", 0)] + cfg["bx1_M"]
            bh0 = d[("g1s", 1)] + cfg["bh0_M"]
            bh1 = d[("g2s", 0)] + cfg["bh1_M"]
            bx0 = d[("g2s", 1)] + cfg["bx0_M"]
        else:
            bx1 = d[("g1s", 0)] + cfg["bx1_R"]
            bh0 = d[("g1e", 1)] + cfg["bh0_R"]
            bh1 = d[("g2s", 0)] + cfg["bh1_R"]
            bx0 = d[("g2s", 1)] + cfg["bx0_R"]
        d["bx1"], d["bh0"], d["bh1"], d["bx0"] = bx1, bh0, bh1, bx0
    idx = 0
    per_b = 26
    for l in range(NL):
        d = lay[l]
        for b in range(2):
            for k in range(per_b):
                sl, op = xreads[idx]; idx += 1
                t = sl - DX
                if b == 1 and l > 0: t = max(t, d["bx1"] + 1)
                if b == 0 and l > 0: t = max(t, lay[l - 1]["bx0"] + 1)
                if l == 0: t = max(t, -DX)
                assert t < sl, (l, b, k, t, sl)
                S.at(t, op)
    chain = [-10**9]
    for l in range(NL):
        d = lay[l]
        for b in range(2):
            e = d[("g1e", b)]
            ops = []
            if M:
                acc = ro.ACC + 16 * b
                for h in range(2):
                    tc = ro.TC[h]
                    for q in range(4):
                        ops.append(V(f"v_cvt_pk_bf16_f32 v{tc+q}, v{acc+8*h+2*q}, v{acc+8*h+2*q+1}",
                                     [f"v{acc+8*h+2*q}", f"v{acc+8*h+2*q+1}"], [f"v{tc+q}"]))
                    o = ds_write128(V_HW, ("v", tc), (b * 7 + h) * 1024, tag=("hw", l, b, h))
                    o.note = ("W", ("h", b), l)
                    ops.append(o)
                needs = [("hw", l, b, 0), ("hw", l, b, 1)]
            else:
                for be in range(2):
                    acc = ro.ACC + 8 * b + 4 * be
                    tc = ro.TC[be]
                    ops.append(V(f"v_cvt_pk_bf16_f32 v{tc}, v{acc}, v{acc+1}", [f"v{acc}", f"v{acc+1}"], [f"v{tc}"]))
                    ops.append(V(f"v_cvt_pk_bf16_f32 v{tc+1}, v{acc+2}, v{acc+3}", [f"v{acc+2}", f"v{acc+3}"], [f"v{tc+1}"]))
                    ops.append(V(f"v_or_b32 v{tc}, v{tc}, v{V_OR}", [f"v{tc}", f"v{V_OR}"], [f"v{tc}"]))
                    o = ds_write64(V_HW, ("v", tc), b * 7168 + be * 256, tag=("hw", l, b, be))
                    o.note = ("W", ("h", b), l)
                    ops.append(o)
                needs = [("hw", l, b, 0), ("hw", l, b, 1)]
            lastw = S.spread(ops, max(chain[0], e + cfg.get("hlag_M" if M else "hlag_R", 3)), cap=cfg.get("cap" if M else "cap_R", 20))
            chain[0] = lastw
            bs = d["bh0"] if b == 0 else d["bh1"]
            assert lastw <= bs, ("h write after barrier", ro.name, l, b, lastw, bs)
            d[("hneed", b)] = needs
        for u in range(2 * nj):
            b = u // nj
            ops = epilogue_ops(ro, u, l, cfg)
            lastw = S.spread(ops, max(chain[0], d[("ue", u)] + cfg.get("elag", 3)), cap=cfg.get("cap" if M else "cap_R", 20))
            chain[0] = lastw
            d[("elast", u)] = lastw
    for l in range(NL):
        d = lay[l]
        for b in range(2):
            for kk in range(7):
                op = ds_read128(("a", ro.HFR + 4 * kk), V_HR, (b * 7 + kk) * 1024)
                op.note = ("R", ("h", b), l)
                use = d[("g2s", b)] + kk
                if b == 0:
                    t = max(use - cfg.get("dh", 5), d["bh0"] + 1)
                else:
                    prevlast = d[("ue", nj - 1)] - 6 + kk
                    t = max(prevlast, d["bh1"] + 1)
                assert t < use, ("h read", ro.name, l, b, kk, t, use)
                S.at(t, op)
        if l > 0:
            needs = [("xw", l, 1, jj, h) for jj in range(nj) for h in range(2)]
            el = max(lay[l - 1][("elast", u)] for u in range(nj, 2 * nj))
            assert el <= d["bx1"], ("x1 write after barrier", ro.name, l, el, d["bx1"])
            S.at(d["bx1"], barrier(need=needs))
        S.at(d["bh0"], barrier(need=d[("hneed", 0)]))
        S.at(d["bh1"], barrier(need=d[("hneed", 1)]))
        if l < NL - 1:
            needs = [("xw", l + 1, 0, jj, h) for jj in range(nj) for h in range(2)]
            el = max(d[("elast", u)] for u in range(nj))
            assert el <= d["bx0"], ("x0 write after barrier", ro.name, l, el, d["bx0"])
            S.at(d["bx0"], barrier(need=needs))
    S.lay = lay
    S.pre_loads = pre_loads
    return S

def common_prologue(kname):
    P = []
    a = P.append
    P += load_ptrs()
    a(salu("s_cmp_ge_u32 s2, 256"))
    a(raw(f"s_cbranch_scc1 {kname}_done"))
    a(V(f"v_lshrrev_b32 v8, 6, v0", ["v0"], ["v8"]))
    a(V(f"v_and_b32 v{V_LANE}, 63, v0", ["v0"], [f"v{V_LANE}"]))
    a(V(f"v_readfirstlane_b32 s{S_WAVE}, v8", ["v8"], [f"s{S_WAVE}"]))
    a(V(f"v_lshlrev_b32 v{V_L16}, 4, v{V_LANE}", [f"v{V_LANE}"], [f"v{V_L16}"]))
    a(V(f"v_add_u32 v{V_HR}, {HB}, v{V_L16}", [f"v{V_L16}"], [f"v{V_HR}"]))
    a(V(f"v_and_b32 v9, 31, v{V_LANE}", [f"v{V_LANE}"], ["v9"]))
    a(V(f"v_mul_u32_u24 v9, 832, v9", ["v9"], ["v9"]))
    a(V(f"v_lshrrev_b32 v10, 5, v{V_LANE}", [f"v{V_LANE}"], ["v10"]))
    a(V(f"v_lshlrev_b32 v10, 4, v10", ["v10"], ["v10"]))
    a(V(f"v_add_u32 v9, v9, v10", ["v9", "v10"], ["v9"]))
    a(salu(f"s_mul_i32 s{S_T0}, s2, 53248", wr=[f"s{S_T0}"]))
    a(V(f"v_add_u32 v{V_XG}, s{S_T0}, v9", ["v9", f"s{S_T0}"], [f"v{V_XG}"]))
    a(salu(f"s_mov_b32 s{S_B1}, 26624", wr=[f"s{S_B1}"]))
    a(raw("s_nop 1", "nop"))
    a(salu(f"s_mul_i32 s{S_T1}, s{S_WAVE}, {ROLE_PK}", rd=[f"s{S_WAVE}"], wr=[f"s{S_T1}"]))
    a(V(f"v_add_u32 v{V_W}, s{S_T1}, v{V_L16}", [f"s{S_T1}", f"v{V_L16}"], [f"v{V_W}"]))
    a(salu(f"s_mul_i32 s{S_T1}, s{S_WAVE}, 6144", rd=[f"s{S_WAVE}"], wr=[f"s{S_T1}"]))
    a(V(f"v_add_u32 v{V_XW}, s{S_T1}, v{V_L16}", [f"s{S_T1}", f"v{V_L16}"], [f"v{V_XW}"]))
    a(raw("s_waitcnt lgkmcnt(0)"))
    P += srd(SRD_X, S_X0, X_BYTES) + srd(SRD_O, S_OUT, X_BYTES) + srd(SRD_W, S_WS, PK_BYTES)
    a(salu(f"s_and_b32 s{S_T1}, s{S_WAVE}, 1", rd=[f"s{S_WAVE}"], wr=[f"s{S_T1}"]))
    a(salu(f"s_mul_i32 s{S_T1}, s{S_T1}, 416", wr=[f"s{S_T1}"]))
    a(salu(f"s_lshr_b32 s{S_T2}, s{S_WAVE}, 1", rd=[f"s{S_WAVE}"], wr=[f"s{S_T2}"]))
    a(salu(f"s_mul_i32 s{S_T2}, s{S_T2}, 26624", wr=[f"s{S_T2}"]))
    a(salu(f"s_add_u32 s{S_T1}, s{S_T1}, s{S_T2}", wr=[f"s{S_T1}"]))
    a(V(f"v_add_u32 v8, s{S_T1}, v{V_XG}", [f"s{S_T1}", f"v{V_XG}"], ["v8"]))
    a(salu(f"s_mul_i32 s{S_T3}, s{S_WAVE}, 13312", rd=[f"s{S_WAVE}"], wr=[f"s{S_T3}"]))
    for i in range(13):
        a(salu(f"s_add_u32 m0, s{S_T3}, {i*992}", rd=[f"s{S_T3}"], wr=["m0"]))
        a(buf_load_lds4(8, SRD_X, 0, i * 32, tag=("xdma", i)))
    return P

def role_prologue(ro, S, cfg):
    P = []
    a = P.append
    M = ro.M
    if M:
        a(salu(f"s_lshl_b32 s{S_T1}, s{S_WAVE}, 11", rd=[f"s{S_WAVE}"], wr=[f"s{S_T1}"]))
        a(V(f"v_add_u32 v{V_HW}, s{S_T1}, v{V_HR}", [f"s{S_T1}", f"v{V_HR}"], [f"v{V_HW}"]))
    else:
        a(V(f"v_lshrrev_b32 v9, 4, v{V_LANE}", [f"v{V_LANE}"], ["v9"]))
        a(V(f"v_and_b32 v10, 15, v{V_LANE}", [f"v{V_LANE}"], ["v10"]))
        a(V("v_lshrrev_b32 v11, 1, v9", ["v9"], ["v11"]))
        a(V("v_lshlrev_b32 v11, 10, v11", ["v11"], ["v11"]))
        a(V("v_and_b32 v12, 1, v9", ["v9"], ["v12"]))
        a(V("v_lshlrev_b32 v13, 5, v12", ["v12"], ["v13"]))
        a(V("v_add_u32 v13, v13, v10", ["v13", "v10"], ["v13"]))
        a(V("v_lshlrev_b32 v13, 4, v13", ["v13"], ["v13"]))
        a(V(f"v_add_u32 v{V_X16}, v11, v13", ["v11", "v13"], [f"v{V_X16}"]))
        a(V("v_lshrrev_b32 v11, 1, v9", ["v9"], ["v11"]))
        a(V("v_lshlrev_b32 v11, 5, v11", ["v11"], ["v11"]))
        a(V("v_add_u32 v11, v11, v10", ["v11", "v10"], ["v11"]))
        a(V("v_lshlrev_b32 v11, 4, v11", ["v11"], ["v11"]))
        a(V("v_lshlrev_b32 v12, 3, v12", ["v12"], ["v12"]))
        a(V("v_add_u32 v11, v11, v12", ["v11", "v12"], ["v11"]))
        a(V(f"v_add_u32 v{V_HW}, {HB + 6*1024}, v11", ["v11"], [f"v{V_HW}"]))
        a(V("v_cmp_eq_u32 vcc, 2, v9", ["v9"], ["vcc"]))
        a(V(f"v_mov_b32 v11, 0x3f80", [], ["v11"]))
        a(raw("s_nop 1", "nop"))
        a(V(f"v_cndmask_b32 v{V_OR}, 0, v11, vcc", ["v11", "vcc"], [f"v{V_OR}"]))
    P += S.pre_loads
    a(barrier(need=[("xdma", i) for i in range(13)]))
    for u in range(2 * ro.nj):
        b, jj = divmod(u, ro.nj)
        for h in range(2):
            o = ds_read128(("v", ro.sreg(u) + 4 * h), V_XW, XB + (b * 26 + 2 * jj + h) * 1024)
            o.note = ("R", ("x", b), 0)
            a(o)
    for u in range(2 * ro.nj):
        xp, xr = ro.x0reg(u)
        s = ro.sreg(u)
        for h in range(2):
            for q in range(4):
                p = s + 4 * h + q
                lo, hi = (xr + 8 * h + 2 * q, xr + 8 * h + 2 * q + 1)
                if xp == "v":
                    a(V(f"v_lshlrev_b32 v{lo}, 16, v{p}", [f"v{p}"], [f"v{lo}"]))
                    a(V(f"v_and_b32 v{hi}, 0xffff0000, v{p}", [f"v{p}"], [f"v{hi}"]))
                else:
                    t = ro.TM[0]
                    a(V(f"v_lshlrev_b32 v{t}, 16, v{p}", [f"v{p}"], [f"v{t}"]))
                    a(V(f"v_and_b32 v{t+1}, 0xffff0000, v{p}", [f"v{p}"], [f"v{t+1}"]))
                    a(V(f"v_accvgpr_write_b32 a{lo}, v{t}", [f"v{t}"], [f"a{lo}"]))
                    a(V(f"v_accvgpr_write_b32 a{hi}, v{t+1}", [f"v{t+1}"], [f"a{hi}"]))
        for i in range(16):
            a(V(f"v_mov_b32 v{s+i}, 1.0", [], [f"v{s+i}"]))
    return P

def out_switch(ro):
    t = ro.TM[0]
    j0 = "s%d" % S_T1
    return [salu(f"s_mul_i32 s{S_T1}, s{S_WAVE}, 192", rd=[f"s{S_WAVE}"], wr=[f"s{S_T1}"]),
            V(f"v_add_u32 v{V_XW}, s{S_T1}, v{V_XG}", [f"s{S_T1}", f"v{V_XG}"], [f"v{V_XW}"])]

def check_lds_protocol(progs):
    acc = []
    nb = {}
    for name, prog in progs.items():
        ep = 0; q = []
        recs = []
        for I in prog:
            if I.kind == "bar": ep += 1
            elif I.kind == "wait" or (I.kind == "raw" and I.t.startswith("s_waitcnt")):
                import re
                m = re.search(r"lgkmcnt\((\d+)\)", I.t)
                if m:
                    n = int(m.group(1))
                    while len(q) > n:
                        r = q.pop(0)
                        if r is not None: r[5] = ep
            elif I.kind in ("dsr", "dsw"):
                r = None
                if isinstance(I.note, tuple):
                    r = [name, I.note[0], I.note[1], I.note[2], ep, None]; recs.append(r)
                q.append(r)
        for r in recs:
            if r[5] is None: r[5] = ep + 1000
        acc += recs; nb[name] = ep
    assert len(set(nb.values())) == 1, nb
    from collections import defaultdict
    W = defaultdict(list); Rd = defaultdict(list)
    for r in acc: (W if r[1] == "W" else Rd)[(r[2], r[3])].append(r)
    bad = 0
    for key, ws in W.items():
        wd = max(w[5] for w in ws)
        for r in Rd.get(key, []):
            if r[4] < wd + 1:
                bad += 1; print("RAW violation", key, r, "write done epoch", wd)
        reg, gen = key
        prev = Rd.get((reg, gen - 1), [])
        if prev:
            rdn = max(r[5] for r in prev); wi = min(w[4] for w in ws)
            if wi < rdn + 1:
                bad += 1; print("WAR violation", key, "reads done epoch", rdn, "write issue epoch", wi)
    assert bad == 0
    return nb

def finish(prog):
    p, st = insert_waits(prog)
    p, nn = insert_hazard_nops(p)
    st["nops"] = nn
    return p, st

def main_kernel(kname, cfg):
    text = []
    P = common_prologue(kname) + [salu(f"s_cmp_eq_u32 s{S_WAVE}, 3"), raw(f"s_cbranch_scc1 {kname}_R")]
    progs = {}
    bodies = {}
    for rn in ("M", "R"):
        ro = Role(rn)
        S = build_main(ro, cfg)
        sw = max(S.lay[NL - 2][("elast", u)] for u in range(2 * ro.nj)) + 1
        first_ep = S.lay[NL - 1][("ue", 0)]
        assert sw <= first_ep
        for o in out_switch(ro): S.at(sw, o)
        full = P + role_prologue(ro, S, cfg) + S.linear()
        full, st = finish(full)
        k = next(i for i, I in enumerate(full) if I.t.startswith("s_cbranch_scc1 " + kname + "_R"))
        progs[rn] = full
        bodies[rn] = (full[:k + 1], full[k + 1:])
        nm = len(S.mf)
        kinds = {}
        for I in full: kinds[I.kind] = kinds.get(I.kind, 0) + 1
        print(f"role {rn}: slots {nm} minslack {S.minslack} stats {st} kinds {kinds}", file=sys.stderr)
        if cfg.get("dump_load"):
            for s in range(S.lay[2][("g1s", 0)], S.lay[3][("g1s", 0)]):
                print(rn, s - S.lay[2][("g1s", 0)], S.load(s), [i.kind for i in S.fill.get(s, [])], file=sys.stderr)
    assert emit(bodies["M"][0]) == emit(bodies["R"][0])
    check_lds_protocol(progs)
    text.append(emit(bodies["M"][0]))
    text.append(emit(bodies["M"][1]))
    text.append(f"  s_endpgm\n{kname}_R:")
    text.append(emit(bodies["R"][1]))
    text.append(f"{kname}_done:\n  s_endpgm")
    return "\n".join(text)

def prepack_kernel(kname):
    L = []
    a = L.append
    a("""  s_load_dwordx4 s[4:7], s[0:1], 0
  s_load_dwordx4 s[8:11], s[0:1], 16
  s_load_dwordx2 s[16:17], s[0:1], 48
  v_lshrrev_b32 v8, 6, v0
  v_and_b32 v0, 63, v0
  s_nop 0
  v_readfirstlane_b32 s48, v8
  s_nop 3
  s_lshl_b32 s50, s2, 2
  s_add_u32 s50, s50, s48          ; f
  s_cmp_ge_u32 s50, 1092
  s_cbranch_scc1 %s_done
  s_waitcnt lgkmcnt(0)""" % kname)
    for dst, ptr, nb in ((SRD_V, S_V, W_BYTES), (SRD_U, S_U, W_BYTES), (SRD_B, S_BS, B_BYTES), (SRD_W, S_WS, PK_BYTES)):
        a(emit(srd(dst, ptr, nb)))
    a(prepack_frag(kname, "s50"))
    a(f"{kname}_done:\n  s_endpgm")
    return "\n".join(L)

def prepack_frag(lab, sf, stflags=""):
    return f"""
  ; l = f/182
  s_mul_i32 s55, {sf}, 5762
  s_lshr_b32 s55, s55, 20          ; layer
  s_mul_i32 s56, s55, 182
  s_sub_u32 s56, {sf}, s56         ; rem
  s_mul_i32 s57, s56, 1395
  s_lshr_b32 s57, s57, 16          ; w = rem/47
  s_mul_i32 s58, s57, 47
  s_sub_u32 s58, s56, s58          ; i
  s_mul_i32 s59, s55, {86528}
  v_and_b32 v9, 31, v0             ; m
  v_lshrrev_b32 v10, 5, v0         ; hh
  v_and_b32 v11, 0x13, v9
  v_and_b32 v12, 4, v9
  v_lshlrev_b32 v12, 1, v12
  v_or_b32 v11, v11, v12
  v_and_b32 v12, 8, v9
  v_lshrrev_b32 v12, 1, v12
  v_or_b32 v11, v11, v12           ; pi(m)
  v_lshlrev_b32 v13, 4, v0
  s_lshl_b32 s60, {sf}, 10
  s_cmp_eq_u32 s57, 3
  s_cbranch_scc1 {lab}_w3
  s_cmp_lt_u32 s58, 26
  s_cbranch_scc0 {lab}_umain
  v_mul_u32_u24 v14, 832, v11
  v_lshlrev_b32 v15, 4, v10
  v_add_u32 v14, v14, v15
  s_mul_i32 s61, s57, {32*832}
  s_add_u32 s61, s61, s59
  s_lshl_b32 s62, s58, 5
  s_add_u32 s61, s61, s62
  buffer_load_dwordx4 v[16:19], v14, s[{SRD_V}:{SRD_V+3}], s61 offen
  s_waitcnt vmcnt(0)
  s_branch {lab}_store
{lab}_umain:
  s_sub_u32 s58, s58, 26
  s_mul_i32 s62, s57, 3
  s_branch {lab}_u
{lab}_w3:
  s_cmp_lt_u32 s58, 13
  s_cbranch_scc0 {lab}_u3
  v_and_b32 v9, 15, v0
  v_lshrrev_b32 v10, 4, v0
  v_add_u32 v14, 96, v9
  v_mul_u32_u24 v14, 832, v14
  v_lshlrev_b32 v15, 4, v10
  v_add_u32 v14, v14, v15
  v_mov_b32 v15, 0x40000000
  v_cmp_gt_u32 vcc, 8, v9
  s_nop 1
  v_cndmask_b32 v14, v15, v14, vcc
  s_lshl_b32 s62, s58, 6
  s_add_u32 s61, s59, s62
  buffer_load_dwordx4 v[16:19], v14, s[{SRD_V}:{SRD_V+3}], s61 offen
  s_waitcnt vmcnt(0)
  s_branch {lab}_store
{lab}_u3:
  s_sub_u32 s58, s58, 13
  s_mov_b32 s62, 9
{lab}_u:
  s_mul_i32 s63, s58, 9363
  s_lshr_b32 s63, s63, 16          ; jj
  s_mul_i32 s61, s63, 7
  s_sub_u32 s58, s58, s61          ; kk
  s_add_u32 s62, s62, s63          ; tile j
  v_mul_u32_u24 v14, 208, v11
  v_lshlrev_b32 v15, 4, v10
  v_add_u32 v14, v14, v15
  s_mul_i32 s61, s62, {32*208}
  s_add_u32 s61, s61, s59
  s_lshl_b32 s63, s58, 5
  s_add_u32 s61, s61, s63
  s_cmp_eq_u32 s58, 6
  s_cbranch_scc1 {lab}_ulast
  buffer_load_dwordx4 v[16:19], v14, s[{SRD_U}:{SRD_U+3}], s61 offen
  s_waitcnt vmcnt(0)
  s_branch {lab}_store
{lab}_ulast:
  v_mov_b32 v15, 0x40000000
  v_cmp_eq_u32 vcc, 0, v10
  s_nop 1
  v_cndmask_b32 v14, v15, v14, vcc
  buffer_load_dwordx4 v[16:19], v14, s[{SRD_U}:{SRD_U+3}], s61 offen
  s_mul_i32 s63, s55, 416
  s_lshl_b32 s61, s62, 5
  s_add_u32 s63, s63, s61
  v_add_u32 v20, s63, v11
  v_lshlrev_b32 v20, 1, v20
  v_cndmask_b32 v20, v20, v15, vcc
  buffer_load_ushort v21, v20, s[{SRD_B}:{SRD_B+3}], 0 offen
  s_waitcnt vmcnt(0)
  v_or_b32 v16, v16, v21
{lab}_store:
  buffer_store_dwordx4 v[16:19], v13, s[{SRD_W}:{SRD_W+3}], s60 offen{stflags}
"""

def kd(name, vgpr, agpr_off, total, sgpr=96):
    return f""".section .rodata,"a"
.p2align 6
.amdhsa_kernel {name}
  .amdhsa_next_free_vgpr {total}
  .amdhsa_next_free_sgpr {sgpr}
  .amdhsa_accum_offset {agpr_off}
  .amdhsa_group_segment_fixed_size 0
  .amdhsa_kernarg_size 56
  .amdhsa_user_sgpr_count 2
  .amdhsa_user_sgpr_kernarg_segment_ptr 1
  .amdhsa_system_sgpr_workgroup_id_x 1
.end_amdhsa_kernel
.text"""

HEADER = """; Kernarg layout for this problem (56 bytes, ptrs only, base s[0:1]):
"""

DEFAULT = dict(bx1_M=12, bh0_M=6, bh1_M=6, bx0_M=11, bx1_R=24, bh0_R=-6, bh1_R=22, bx0_R=20,
               pace_M=2.0, pace_R=2.0, dx=4, dx_R=4, cap=20, cap_R=24)

def generate(cfg):
    K1 = "dcn_prepack_kernel"; K2 = "standalone__cross_network_dcn_v2__recsys_kernel"
    s = HEADER
    s += f"; @launch kernel={K1} grid=(273,1,1) block=(256,1,1) lds=0\n"
    s += f"; @launch kernel={K2} grid=(256,1,1) block=(256,1,1) lds={LDS_BYTES}\n"
    s += '.amdgcn_target "amdgcn-amd-amdhsa--gfx950"\n.text\n'
    for name, body, args in ((K1, prepack_kernel(K1), (64, 64, 64)), (K2, main_kernel(K2, cfg), (256, 256, 512))):
        s += f".globl {name}\n.p2align 8\n.type {name},@function\n{name}:\n{body}\n" + kd(name, *args) + "\n"
    return s

if __name__ == "__main__":
    cfg = dict(DEFAULT)
    for arg in sys.argv[2:]:
        k, v = arg.split("=")
        try: v = int(v)
        except ValueError:
            try: v = float(v)
            except ValueError: pass
        cfg[k] = v
    out = sys.argv[1] if len(sys.argv) > 1 else "standalone__cross_network_dcn_v2__recsys.s"
    txt = generate(cfg)
    open(out, "w").write(txt)
    print("wrote", out, len(txt), "bytes", file=sys.stderr)
```

```python
import re

def rng(p, a, n=1):
    return [f"{p}{i}" for i in range(a, a + n)]

def R(p, a, n=1):
    return f"{p}{a}" if n == 1 else f"{p}[{a}:{a+n-1}]"

class Ins:
    __slots__ = ("t", "kind", "rd", "wr", "tag", "need", "srcC", "passes", "cost", "note")
    def __init__(self, t, kind, rd=(), wr=(), tag=None, need=(), srcC=(), passes=0, cost=4, note=""):
        self.t = t; self.kind = kind
        self.rd = set(rd); self.wr = set(wr)
        self.tag = tag; self.need = list(need)
        self.srcC = set(srcC); self.passes = passes; self.cost = cost; self.note = note
    def __repr__(self): return self.t

def mfma32(d, a, b, c=None):
    D = R(d[0], d[1], 16); A = R(a[0], a[1], 4); B = R(b[0], b[1], 4)
    if c is None: C = D; sc = rng(d[0], d[1], 16)
    elif c == 0: C = "0"; sc = []
    else: C = R(c[0], c[1], 16); sc = rng(c[0], c[1], 16)
    return Ins(f"v_mfma_f32_32x32x16_bf16 {D}, {A}, {B}, {C}", "mfma",
               rd=rng(a[0], a[1], 4) + rng(b[0], b[1], 4) + sc, wr=rng(d[0], d[1], 16),
               srcC=sc, passes=8, cost=8)

def mfma16(d, a, b, c=None):
    D = R(d[0], d[1], 4); A = R(a[0], a[1], 4); B = R(b[0], b[1], 4)
    if c is None: C = D; sc = rng(d[0], d[1], 4)
    elif c == 0: C = "0"; sc = []
    else: C = R(c[0], c[1], 4); sc = rng(c[0], c[1], 4)
    return Ins(f"v_mfma_f32_16x16x32_bf16 {D}, {A}, {B}, {C}", "mfma",
               rd=rng(a[0], a[1], 4) + rng(b[0], b[1], 4) + sc, wr=rng(d[0], d[1], 4),
               srcC=sc, passes=4, cost=8)

def valu(t, rd, wr, cost=4):
    return Ins(t, "valu", rd=rd, wr=wr, cost=cost)

def salu(t, rd=(), wr=()):
    return Ins(t, "salu", rd=rd, wr=wr, cost=0)

def ds_read128(d, addr, off, tag=None):
    return Ins(f"ds_read_b128 {R(d[0], d[1], 4)}, v{addr} offset:{off}", "dsr",
               rd=[f"v{addr}"], wr=rng(d[0], d[1], 4), tag=tag)

def ds_write128(addr, s, off, tag=None):
    return Ins(f"ds_write_b128 v{addr}, {R(s[0], s[1], 4)} offset:{off}", "dsw",
               rd=[f"v{addr}"] + rng(s[0], s[1], 4), tag=tag, cost=16)

def ds_write64(addr, s, off, tag=None):
    return Ins(f"ds_write_b64 v{addr}, {R(s[0], s[1], 2)} offset:{off}", "dsw",
               rd=[f"v{addr}"] + rng(s[0], s[1], 2), tag=tag, cost=8)

def buf_load4(d, voff, srd, soff, imm, flags="", tag=None):
    so = soff if isinstance(soff, str) else str(soff)
    rd = [f"v{voff}"] + rng("s", srd, 4) + ([so] if so.startswith("s") else [])
    o = f" offset:{imm}" if imm else ""
    return Ins(f"buffer_load_dwordx4 {R(d[0], d[1], 4)}, v{voff}, s[{srd}:{srd+3}], {so} offen{o}{flags}", "vml",
               rd=rd, wr=rng(d[0], d[1], 4), tag=tag)

def buf_load_lds4(voff, srd, soff, imm, flags="", tag=None):
    so = soff if isinstance(soff, str) else str(soff)
    rd = [f"v{voff}", "m0"] + rng("s", srd, 4) + ([so] if so.startswith("s") else [])
    o = f" offset:{imm}" if imm else ""
    return Ins(f"buffer_load_dwordx4 v{voff}, s[{srd}:{srd+3}], {so} offen{o}{flags} lds", "vml",
               rd=rd, tag=tag)

def buf_store4(s, voff, srd, soff, imm, flags="", tag=None):
    so = soff if isinstance(soff, str) else str(soff)
    rd = [f"v{voff}"] + rng("s", srd, 4) + ([so] if so.startswith("s") else []) + rng(s[0], s[1], 4)
    o = f" offset:{imm}" if imm else ""
    return Ins(f"buffer_store_dwordx4 {R(s[0], s[1], 4)}, v{voff}, s[{srd}:{srd+3}], {so} offen{o}{flags}", "vms",
               rd=rd, tag=tag)

def barrier(need=()):
    return Ins("s_barrier", "bar", need=need, cost=0)

def raw(t, kind="raw", **kw):
    return Ins(t, kind, **kw)

def insert_waits(prog, lg_init=None, vm_init=None):
    out = []
    lg = []
    vm = []
    maxlg = maxvm = 0
    for I in prog:
        if I.kind == "waitall":
            out.append(Ins("s_waitcnt vmcnt(0) lgkmcnt(0)", "wait")); lg = []; vm = []
            continue
        if I.kind == "flushstate":
            lg = []; vm = []
            continue
        touch = I.rd | I.wr
        def scan(q):
            last = -1
            for i, (regs, tag) in enumerate(q):
                if (regs & touch) or (tag is not None and tag in I.need):
                    last = i
            return last
        li = scan(lg); vi = scan(vm)
        parts = []
        if vi >= 0:
            n = len(vm) - 1 - vi
            assert n <= 63
            parts.append(f"vmcnt({n})"); vm = vm[vi + 1:]
        if li >= 0:
            n = len(lg) - 1 - li
            if n > 15:
                n = 15; li = len(lg) - 1 - 15
            parts.append(f"lgkmcnt({n})"); lg = lg[li + 1:]
        if parts:
            out.append(Ins("s_waitcnt " + " ".join(parts), "wait"))
        out.append(I)
        if I.kind in ("dsr", "dsw"):
            lg.append((set(I.wr), I.tag))
            if len(lg) > 15:
                out.pop()
                out.append(Ins("s_waitcnt lgkmcnt(14)", "wait"))
                out.append(I)
                lg = lg[len(lg) - 15:]
            maxlg = max(maxlg, len(lg))
        elif I.kind in ("vml", "vms"):
            vm.append((set(I.wr), I.tag))
            if len(vm) > 63:
                out.pop()
                out.append(Ins("s_waitcnt vmcnt(62)", "wait"))
                out.append(I)
                vm = vm[len(vm) - 63:]
            maxvm = max(maxvm, len(vm))
    return out, dict(maxlg=maxlg, maxvm=maxvm)

MF_TO_USE = {2: 5, 4: 8, 8: 12, 16: 20}
MF_C_WAR = {2: 1, 4: 3, 8: 7, 16: 15}

def states(I):
    if I.kind == "nop":
        m = re.match(r"s_nop (\d+)", I.t); return int(m.group(1)) + 1
    if I.kind in ("label", "comment", "mark", "cold"): return 0
    return 1

def insert_hazard_nops(prog):
    out = []
    pos = 0
    mf_w = {}
    mf_c = {}
    valu_w = {}
    valu_ws = {}
    st_data = {}
    m0_w = -100
    nnop = 0
    for I in prog:
        need = 0
        def req(p, n):
            nonlocal need
            d = pos - p - 1
            if d < n: need = max(need, n - d)
        if I.kind == "mfma":
            for r in I.rd:
                if r in valu_w: req(valu_w[r], 2)
                if r in mf_w:
                    p, ps, dst = mf_w[r]
                    if r in I.srcC:
                        if dst == frozenset(I.srcC) and ps == I.passes: pass
                        else: req(p, {2: 4, 4: 6, 8: 10, 16: 18}[ps])
                    if r not in I.srcC or False: req(p, MF_TO_USE[ps])
            for r in I.wr:
                if r in mf_w and r not in I.srcC:
                    p, ps, dst = mf_w[r]
                    req(p, {2: 4, 4: 6, 8: 10, 16: 18}[ps])
        elif I.kind in ("valu", "dsr", "dsw", "vml", "vms"):
            for r in (I.rd | I.wr):
                if r in mf_w:
                    p, ps, dst = mf_w[r]; req(p, MF_TO_USE[ps])
            if I.kind == "valu" or I.kind in ("dsr", "vml"):
                for r in I.wr:
                    if r in mf_c:
                        p, ps = mf_c[r]; req(p, MF_C_WAR[ps])
            if I.kind == "valu":
                for r in I.wr:
                    if r in st_data: req(st_data[r], 2)
                for r in I.rd:
                    if r in valu_ws: req(valu_ws[r], 2)
                if "readfirstlane" in I.t or "readlane" in I.t:
                    for r in I.rd:
                        if r in valu_w: req(valu_w[r], 1)
                if "permlane" in I.t:
                    for r in (I.rd | I.wr):
                        if r in valu_w: req(valu_w[r], 2)
            if I.kind in ("vml", "vms"):
                for r in I.rd:
                    if r in valu_ws: req(valu_ws[r], 5)
                if "m0" in I.rd: req(m0_w, 1)
            if I.kind in ("dsr", "vml"):
                for r in I.wr:
                    if r in st_data: req(st_data[r], 1)
        if need:
            n = need
            while n > 0:
                k = min(n, 16)
                out.append(Ins(f"s_nop {k-1}", "nop")); pos += k; n -= k; nnop += 1
        out.append(I)
        if I.kind == "mfma":
            for r in I.wr: mf_w[r] = (pos, I.passes, frozenset(I.wr))
            for r in I.srcC: mf_c[r] = (pos, I.passes)
        elif I.kind == "valu":
            for r in I.wr:
                if r.startswith("s") or r == "vcc": valu_ws[r] = pos
                else: valu_w[r] = pos
                mf_w.pop(r, None)
        elif I.kind in ("dsr", "vml"):
            for r in I.wr: mf_w.pop(r, None)
        if I.kind == "vms":
            for r in I.rd:
                if r[0] in "va": st_data[r] = pos
        if I.kind == "salu" and "m0" in I.wr: m0_w = pos
        pos += states(I)
    return out, nnop

def emit(prog):
    lines = []
    for I in prog:
        if I.kind == "label": lines.append(I.t)
        elif I.kind == "comment": lines.append("; " + I.t)
        else: lines.append("  " + I.t)
    return "\n".join(lines)

class Slots:
    def __init__(self):
        self.mf = []
        self.fill = {}
        self.pre = {}
    def add(self, ins):
        self.mf.append(ins); return len(self.mf) - 1
    def at(self, slot, ins):
        self.fill.setdefault(slot, []).append(ins)
    def before(self, slot, ins):
        self.pre.setdefault(slot, []).append(ins)
    def load(self, slot):
        return sum(i.cost for i in self.fill.get(slot, [])) + sum(i.cost for i in self.pre.get(slot, []))
    def spread(self, ops, start, cap=20, maxslot=None):
        s = start
        for o in ops:
            while self.load(s) + o.cost > cap: s += 1
            self.at(s, o)
        return s
    def linear(self):
        out = []
        n = len(self.mf)
        last = max([n - 1] + list(self.fill) + list(self.pre))
        first = min([0] + list(self.fill) + list(self.pre))
        for s in range(first, last + 1):
            out += self.pre.get(s, [])
            if 0 <= s < n: out.append(self.mf[s])
            out += self.fill.get(s, [])
        return out
```

```python
import re
from core import *


def ds_read32(d, addr, off, tag=None):
    return Ins(f"ds_read_b32 v{d}, v{addr} offset:{off}", "dsr", rd=[f"v{addr}"], wr=[f"v{d}"], tag=tag)


def ds_write32(addr, s, off, tag=None):
    return Ins(f"ds_write_b32 v{addr}, v{s} offset:{off}", "dsw", rd=[f"v{addr}", f"v{s}"], tag=tag, cost=4)


def mark(name):
    return Ins("; mark " + str(name), "mark", note=name, cost=0)


def is_wait(I):
    return I.kind == "wait" or (I.kind == "raw" and I.t.startswith("s_waitcnt"))


def parse_wait(I):
    vm = lg = None
    m = re.search(r"vmcnt\((\d+)\)", I.t)
    if m: vm = int(m.group(1))
    m = re.search(r"lgkmcnt\((\d+)\)", I.t)
    if m: lg = int(m.group(1))
    return vm, lg


def mk_wait(vm, lg):
    parts = []
    if vm is not None: parts.append(f"vmcnt({vm})")
    if lg is not None: parts.append(f"lgkmcnt({lg})")
    return Ins("s_waitcnt " + " ".join(parts), "wait")


def insert_waits2(prog, vm_win=0, lg_win=0):
    out = []
    lg = []; vm = []
    maxlg = maxvm = 0
    n = len(prog)

    def scan(q, I):
        touch = I.rd | I.wr
        last = -1
        for i, (regs, tag) in enumerate(q):
            if (regs & touch) or (tag is not None and tag in I.need): last = i
        return last

    def look(q, start, win):
        best = -1; cnt = 0
        for k in range(start, n):
            J = prog[k]
            if J.kind in ("label", "branch"): break
            if J.kind == "mfma":
                cnt += 1
                if cnt > win: break
            best = max(best, scan(q, J))
        return best

    for idx, I in enumerate(prog):
        if I.kind == "waitall":
            out.append(Ins("s_waitcnt vmcnt(0) lgkmcnt(0)", "wait")); lg = []; vm = []
            continue
        if is_wait(I):
            v, l = parse_wait(I)
            if v is not None and len(vm) > v: vm = vm[len(vm) - v:] if v else []
            if l is not None and len(lg) > l: lg = lg[len(lg) - l:] if l else []
            out.append(I); continue
        li = scan(lg, I); vi = scan(vm, I)
        if vi >= 0 and vm_win: vi = max(vi, look(vm, idx, vm_win))
        if li >= 0 and lg_win: li = max(li, look(lg, idx, lg_win))
        v = l = None
        if vi >= 0:
            v = len(vm) - 1 - vi; vm = vm[vi + 1:]
        if li >= 0:
            l = len(lg) - 1 - li
            if l > 15: l = 15; li = len(lg) - 1 - 15
            lg = lg[li + 1:]
        if I.kind in ("dsr", "dsw") and len(lg) >= 15:
            l = 14 if l is None else min(l, 14); lg = lg[len(lg) - l:] if l else []
        if I.kind in ("vml", "vms") and len(vm) >= 63:
            v = 62 if v is None else min(v, 62); vm = vm[len(vm) - v:] if v else []
        if v is not None or l is not None: out.append(mk_wait(v, l))
        out.append(I)
        if I.kind in ("dsr", "dsw"):
            lg.append((set(I.wr), I.tag)); maxlg = max(maxlg, len(lg))
        elif I.kind in ("vml", "vms"):
            vm.append((set(I.wr), I.tag)); maxvm = max(maxvm, len(vm))
    return out, dict(maxlg=maxlg, maxvm=maxvm)


def verify_waits(prog):
    lg = []; vm = []
    bad = 0
    for idx, I in enumerate(prog):
        if is_wait(I):
            v, l = parse_wait(I)
            if v is not None and len(vm) > v: vm = vm[len(vm) - v:] if v else []
            if l is not None and len(lg) > l: lg = lg[len(lg) - l:] if l else []
            continue
        touch = I.rd | I.wr
        for q, nm in ((lg, "lgkm"), (vm, "vm")):
            for regs, tag in q:
                if (regs & touch) or (tag is not None and tag in I.need):
                    bad += 1; print("WAIT MISSING", nm, idx, I.t, regs & touch, tag)
        if I.kind in ("dsr", "dsw"):
            lg.append((set(I.wr), I.tag))
            if len(lg) > 15: bad += 1; print("lgkm overflow", idx)
        elif I.kind in ("vml", "vms"):
            vm.append((set(I.wr), I.tag))
            if len(vm) > 63: bad += 1; print("vm overflow", idx)
    assert bad == 0
    return True


def split_core(seg):
    res = []
    pre = dict(vm=None, lg=None, nop=0)
    for I in seg:
        if is_wait(I):
            v, l = parse_wait(I)
            if v is not None: pre["vm"] = v if pre["vm"] is None else min(v, pre["vm"])
            if l is not None: pre["lg"] = l if pre["lg"] is None else min(l, pre["lg"])
        elif I.kind == "nop":
            pre["nop"] += states(I)
        else:
            res.append((pre, I)); pre = dict(vm=None, lg=None, nop=0)
    return res, pre


def merge_segments(segs):
    sp = [split_core(s) for s in segs]
    n = len(sp[0][0])
    for k, (c, _) in enumerate(sp):
        assert len(c) == n, ("body length differs", k, len(c), n)
        for i in range(n):
            if c[i][1].t != sp[0][0][i][1].t:
                raise AssertionError(("body text differs", k, i, c[i][1].t, sp[0][0][i][1].t))

    def mn(a, b):
        if a is None: return b
        if b is None: return a
        return min(a, b)

    def merged(pres):
        v = l = None; nop = 0
        for p in pres:
            v = mn(v, p["vm"]); l = mn(l, p["lg"]); nop = max(nop, p["nop"])
        o = []
        if v is not None or l is not None: o.append(mk_wait(v, l))
        while nop > 0:
            k = min(nop, 16); o.append(Ins(f"s_nop {k-1}", "nop")); nop -= k
        return o
    pres = [merged([sp[k][0][i][0] for k in range(len(segs))]) for i in range(n)]
    tail = merged([sp[k][1] for k in range(len(segs))])
    outs = []
    for k in range(len(segs)):
        o = []
        for i in range(n):
            o += pres[i]; o.append(sp[k][0][i][1])
        o += tail
        outs.append(o)
    return outs


class Slots2(Slots):
    def __init__(self):
        super().__init__()
        self.dur = []
        self.gap = {}
    def add(self, ins):
        self.dur.append(ins.passes * 4)
        return super().add(ins)
    def cap(self, slot, capf):
        d = self.dur[slot] if 0 <= slot < len(self.dur) else 32
        return capf(d)
    def spread2(self, ops, start, capf):
        s = start
        for o in ops:
            while self.load(s) + o.cost > self.cap(s, capf) and s < len(self.dur) + 400: s += 1
            self.at(s, o)
        return s
    def times(self):
        t = []; c = 0
        for i, d in enumerate(self.dur):
            c += self.gap.get(i, 0)
            t.append(c); c += d
        return t
```

```python
import sys
from core2 import *

NL = 6
HB = 0
XB = 14336
VB = 67584
LDS_BYTES = VB + 92 * 1024
TILE_U = 6784
M_BLK = 26 * 1024 + 3 * TILE_U
R_BLK = 7 * 1024 + 4 * TILE_U
LP = 3 * M_BLK + R_BLK
PK_BYTES = NL * LP
X_BYTES = 16384 * 832
W_BYTES = 6 * 86528
B_BYTES = 6 * 832
NPROD = 52
OOB = 0x40000000

S_X0, S_U, S_V, S_BS, S_OUT, S_DBG, S_WS = 4, 6, 8, 10, 12, 14, 16
SRD_X, SRD_O, SRD_W, SRD_V, SRD_U, SRD_B, SRD_D = 20, 24, 28, 32, 36, 40, 44
S_WAVE, S_CNT = 48, 49
S_T0, S_T1, S_T2, S_T3, S_T4, S_T5 = 50, 51, 52, 53, 54, 55
S_OS = 56
S_WIN = 59
S_G, S_TYPE, S_SRC, S_DST = 71, 72, 73, 74
STAMP0 = 76
V_L16, V_W6, V_HW, V_XG = 0, 1, 2, 3
V_XR = 4
V_XW = 8
TC = [236, 240]
TM = 244
PKD = 108


class Role:
    def __init__(self, name):
        self.name = name
        self.M = name == "M"
        self.S0 = 12
        if self.M:
            self.nj = 3; self.nV = 26; self.X0 = 108; self.ACC = 204; self.blk_u = 26 * 1024
        else:
            self.nj = 4; self.nV = 7; self.X0 = 140; self.ACC = 220; self.blk_u = 7 * 1024
        self.nU = 7 * self.nj
        self.nW = self.nV + self.nU
        self.X0A = 140
        self.XST, self.NXST = 188, 8
        self.V_OB = 248 if self.M else 10
        self.HFR = 220
    def sreg(self, u): return self.S0 + 16 * u
    def x0reg(self, u, cfg):
        if self.M: return ("v", self.X0 + 16 * u)
        ov = cfg.get("r_ov", [1, 2, 5])
        if u in ov: return ("a", self.X0A + 16 * ov.index(u))
        k = [x for x in range(8) if x not in ov].index(u)
        return ("v", self.X0 + 16 * k)
    def wfrag(self, i):
        if i < self.nV: return i * 1024, V_L16
        jj, kk = divmod(i - self.nV, 7)
        o = self.blk_u + jj * TILE_U
        return (o + kk * 1024, V_L16) if kk < 6 else (o + 6144, V_W6)


def V(t, rd=(), wr=()): return valu(t, rd, wr)
def T(text):
    out = []
    for l in text.strip("\n").split("\n"):
        l = l.strip()
        if not l: continue
        if l.endswith(":"): out.append(Ins(l, "label"))
        elif l.startswith(";"): out.append(Ins(l[1:].strip(), "comment"))
        else: out.append(Ins(l, "raw"))
    return out


def srd(dst, ptr, nbytes):
    return f"""
s_mov_b32 s{dst}, s{ptr}
s_mov_b32 s{dst+1}, s{ptr+1}
s_mov_b32 s{dst+2}, {nbytes}
s_mov_b32 s{dst+3}, 0x20000
"""


def stamp(k, real=False):
    a = STAMP0 + 2 * k
    return Ins(f"s_memrealtime s[{a}:{a+1}]" if real else f"s_memtime s[{a}:{a+1}]", "salu", cost=0)


def stamp_dump(n):
    t = f"""
s_waitcnt vmcnt(0) lgkmcnt(0)
s_lshl_b32 s{S_T0}, s2, 2
s_add_u32 s{S_T0}, s{S_T0}, s{S_WAVE}
s_lshl_b32 s{S_T0}, s{S_T0}, 7
s_add_u32 s{S_T0}, s{S_T0}, {128 << 20}
s_mov_b32 s{SRD_X}, s{S_WS}
s_mov_b32 s{SRD_X+1}, s{S_WS+1}
s_mov_b32 s{SRD_X+2}, 0x10000000
s_mov_b64 exec, 1
"""
    for k in range(n):
        t += f"""
v_mov_b32 v8, s{STAMP0 + 2*k}
v_mov_b32 v10, s{S_T0}
buffer_store_dword v8, v10, s[{SRD_X}:{SRD_X+3}], 0 offen offset:{4*k}
s_nop 1
"""
    return T(t)


def stamp_dump4(M):
    S = lambda k: STAMP0 + 2 * k
    t = f"""
s_waitcnt vmcnt(0) lgkmcnt(0)
s_mov_b64 exec, 1
v_mov_b32 v10, 0
"""
    def at(op, word, expr):
        return expr + f"""
v_mov_b32 v8, s{S_T0}
buffer_atomic_{op} v8, v10, s[{SRD_D}:{SRD_D+3}], 0 offen offset:{4*word}
s_nop 1
"""
    d = lambda k: f"s_sub_u32 s{S_T0}, s{S(k)}, s{S(1)}\n"
    if M:
        t += f"s_cmp_eq_u32 s{S_WAVE}, 0\ns_cbranch_scc0 dump4_skip\n"
        t += at("umax", 1, f"s_not_b32 s{S_T0}, s{S(1)}\n")
        t += at("umax", 2, f"s_mov_b32 s{S_T0}, s{S(1)}\n")
        t += at("umax", 3, f"s_mov_b32 s{S_T0}, s{S(6)}\n")
        t += at("add", 4, d(2)) + at("add", 5, d(3)) + at("add", 6, d(4)) + at("add", 7, d(5)) + at("add", 8, d(6))
        t += at("umax", 10, d(2)) + at("umax", 13, d(3)) + at("umax", 14, d(4))
        t += at("add", 12, f"s_sub_u32 s{S_T0}, s{S(9)}, s{S(8)}\n")
        t += "dump4_skip:\n"
    else:
        t += at("add", 9, d(7)) + at("umax", 11, d(7)) + at("umax", 15, d(6))
    return T(t)


def pi_m(dst, m, t):
    return f"""
v_and_b32 v{dst}, 0x13, v{m}
v_and_b32 v{t}, 4, v{m}
v_lshlrev_b32 v{t}, 1, v{t}
v_or_b32 v{dst}, v{dst}, v{t}
v_and_b32 v{t}, 8, v{m}
v_lshrrev_b32 v{t}, 1, v{t}
v_or_b32 v{dst}, v{dst}, v{t}
"""


def xr_bases(dst, row, hh, base, t):
    mm, odd, c0, p0, a, b2 = t, t + 1, t + 2, t + 3, t + 4, t + 5
    return f"""
v_lshrrev_b32 v{mm}, 1, v{row}
v_and_b32 v{mm}, 7, v{mm}
v_and_b32 v{odd}, 1, v{row}
v_lshrrev_b32 v{c0}, 4, v{row}
v_mul_u32_u24 v{c0}, 13312, v{c0}
v_and_b32 v{a}, 3, v{mm}
v_lshlrev_b32 v{b2}, 8, v{a}
v_add_u32 v{c0}, v{c0}, v{b2}
v_lshrrev_b32 v{b2}, 2, v{mm}
v_lshlrev_b32 v{b2}, 7, v{b2}
v_add_u32 v{c0}, v{c0}, v{b2}
v_mul_u32_u24 v{b2}, 6144, v{odd}
v_add_u32 v{c0}, v{c0}, v{b2}
v_add_u32 v{c0}, {base}, v{c0}
v_xor_b32 v{p0}, v{hh}, v{a}
v_lshlrev_b32 v{p0}, 4, v{p0}
v_lshlrev_b32 v{a}, 6, v{odd}
v_add3_u32 v{dst}, v{c0}, v{a}, v{p0}
v_xor_b32 v{b2}, 32, v{p0}
v_add3_u32 v{dst+1}, v{c0}, v{a}, v{b2}
v_xor_b32 v{a}, 64, v{a}
v_lshlrev_b32 v{odd}, 10, v{odd}
v_add3_u32 v{c0}, v{c0}, v{a}, v{odd}
v_add_u32 v{dst+2}, v{c0}, v{p0}
v_add_u32 v{dst+3}, v{c0}, v{b2}
"""


def x16_base(dst, row16, g, a0, base, t):
    mm, odd, c0, a, b2 = t, t + 1, t + 2, t + 3, t + 4
    s = f"""
v_lshrrev_b32 v{mm}, 1, v{row16}
v_and_b32 v{odd}, 1, v{row16}
v_and_b32 v{a}, 3, v{mm}
v_lshlrev_b32 v{c0}, 8, v{a}
v_lshrrev_b32 v{b2}, 2, v{mm}
v_lshlrev_b32 v{b2}, 7, v{b2}
v_add_u32 v{c0}, v{c0}, v{b2}
v_xor_b32 v{a}, v{g}, v{a}
v_lshlrev_b32 v{a}, 4, v{a}
v_add_u32 v{c0}, v{c0}, v{a}
v_add_u32 v{c0}, {base}, v{c0}
"""
    if isinstance(a0, int):
        s += f"""
v_mul_u32_u24 v{b2}, {(6 + a0) * 1024}, v{odd}
v_add_u32 v{c0}, v{c0}, v{b2}
v_xor_b32 v{odd}, {a0}, v{odd}
v_lshlrev_b32 v{odd}, 6, v{odd}
v_add_u32 v{dst}, v{c0}, v{odd}
"""
    else:
        s += f"""
v_add_u32 v{b2}, 6, {a0}
v_mul_u32_u24 v{b2}, v{b2}, v{odd}
v_lshlrev_b32 v{b2}, 10, v{b2}
v_add_u32 v{c0}, v{c0}, v{b2}
v_xor_b32 v{odd}, {a0}, v{odd}
v_lshlrev_b32 v{odd}, 6, v{odd}
v_add_u32 v{dst}, v{c0}, v{odd}
"""
    return s


def xg_pattern(dst, lane, t):
    return f"""
v_lshrrev_b32 v{t}, 4, v{lane}
v_and_b32 v{t+1}, 3, v{lane}
v_xor_b32 v{t+1}, v{t+1}, v{t}
v_lshlrev_b32 v{dst}, 4, v{t+1}
v_lshrrev_b32 v{t+1}, 3, v{lane}
v_and_b32 v{t+1}, 1, v{t+1}
v_lshlrev_b32 v{t+1}, 2, v{t+1}
v_or_b32 v{t}, v{t}, v{t+1}
v_mul_u32_u24 v{t}, 1664, v{t}
v_and_b32 v{t+1}, 4, v{lane}
v_lshlrev_b32 v{t+1}, 4, v{t+1}
v_add3_u32 v{dst}, v{dst}, v{t}, v{t+1}
"""


LANE = 252
def pack_loads(lab, cfg, stg, tb=204, LANE=LANE):
    fl = cfg.get("pkflags", "")
    t = f"""
s_mul_i32 s{S_T0}, s{S_G}, 2521
s_lshr_b32 s{S_T0}, s{S_T0}, 16
s_mul_i32 s{S_T1}, s{S_T0}, 26
s_sub_u32 s{S_TYPE}, s{S_G}, s{S_T1}
s_mul_i32 s{S_SRC}, s{S_T0}, 86528
s_mul_i32 s{S_DST}, s{S_T0}, {LP}
v_and_b32 v{tb+0}, 31, v{LANE}
v_lshrrev_b32 v{tb+1}, 5, v{LANE}
{pi_m(tb+2, tb, tb+3)}
v_lshlrev_b32 v{tb+1}, 4, v{tb+1}
s_cmp_lt_u32 s{S_TYPE}, 13
s_cbranch_scc1 {lab}_lu
s_cmp_eq_u32 s{S_TYPE}, 25
s_cbranch_scc1 {lab}_l3
s_sub_u32 s{S_T1}, s{S_TYPE}, 13
s_lshr_b32 s{S_T2}, s{S_T1}, 2
s_and_b32 s{S_T1}, s{S_T1}, 3
s_mul_i32 s{S_T3}, s{S_T2}, {32*832}
s_add_u32 s{S_SRC}, s{S_SRC}, s{S_T3}
s_mul_i32 s{S_T3}, s{S_T1}, {7*32}
s_add_u32 s{S_SRC}, s{S_SRC}, s{S_T3}
s_mul_i32 s{S_T3}, s{S_T2}, {M_BLK}
s_add_u32 s{S_DST}, s{S_DST}, s{S_T3}
s_mul_i32 s{S_T3}, s{S_T1}, {7*1024}
s_add_u32 s{S_DST}, s{S_DST}, s{S_T3}
v_mul_u32_u24 v{tb+3}, 224, v{tb+2}
v_add3_u32 v{tb+3}, v{tb+3}, v{tb+1}, s{stg}
"""
    for i in range(7):
        t += f"""v_add_u32 v{tb+0}, {64*i}, v{LANE}
v_mul_u32_u24 v{tb+1}, 4682, v{tb+0}
v_lshrrev_b32 v{tb+1}, 16, v{tb+1}
v_mul_u32_u24 v{tb+2}, 14, v{tb+1}
v_sub_u32 v{tb+0}, v{tb+0}, v{tb+2}
v_lshlrev_b32 v{tb+0}, 4, v{tb+0}
v_mul_u32_u24 v{tb+1}, 832, v{tb+1}
v_add_u32 v{tb+4+i}, v{tb+0}, v{tb+1}
"""
    for i in range(7):
        t += f"""s_add_u32 m0, s{stg}, {i*1024}
s_nop 0
buffer_load_dwordx4 v{tb+4+i}, s[{SRD_V}:{SRD_V+3}], s{S_SRC} offen{fl} lds
"""
    lin = lambda srd_: "".join(
        (f"s_mov_b32 m0, s{stg}\ns_nop 0\n" if i == 0 else (f"s_add_u32 m0, s{stg}, 4096\ns_add_u32 s{S_SRC}, s{S_SRC}, 4096\n" if i == 4 else "")) +
        f"buffer_load_dwordx4 v{V_L16}, s[{srd_}:{srd_+3}], s{S_SRC} offen offset:{(i%4)*1024}{fl} lds\n" for i in range(7))
    t += f"""
s_branch {lab}_ldone
{lab}_l3:
v_and_b32 v{tb+0}, 15, v{LANE}
v_lshrrev_b32 v{tb+1}, 2, v{tb+0}
v_lshlrev_b32 v{tb+1}, 1, v{tb+1}
v_and_b32 v{tb+2}, 1, v{tb+0}
v_add_u32 v{tb+1}, v{tb+1}, v{tb+2}
v_mul_u32_u24 v{tb+1}, 832, v{tb+1}
v_and_b32 v{tb+2}, 2, v{tb+0}
v_lshlrev_b32 v{tb+2}, 5, v{tb+2}
v_lshrrev_b32 v{tb+3}, 4, v{LANE}
v_lshlrev_b32 v{tb+3}, 4, v{tb+3}
v_add3_u32 v{tb+3}, v{tb+1}, v{tb+2}, v{tb+3}
v_add_u32 v{tb+3}, s{stg}, v{tb+3}
s_add_u32 s{S_DST}, s{S_DST}, {3*M_BLK}
s_add_u32 s{S_SRC}, s{S_SRC}, {96*832}
{lin(SRD_V)}
s_branch {lab}_ldone
{lab}_lu:
s_mul_i32 s{S_T3}, s{S_TYPE}, {32*208}
s_add_u32 s{S_SRC}, s{S_SRC}, s{S_T3}
s_mul_i32 s{S_T1}, s{S_TYPE}, 86
s_lshr_b32 s{S_T1}, s{S_T1}, 8
s_min_u32 s{S_T1}, s{S_T1}, 3
s_mul_i32 s{S_T2}, s{S_T1}, 3
s_sub_u32 s{S_T2}, s{S_TYPE}, s{S_T2}
s_mul_i32 s{S_T3}, s{S_T1}, {M_BLK}
s_add_u32 s{S_DST}, s{S_DST}, s{S_T3}
s_mul_i32 s{S_T3}, s{S_T2}, {TILE_U}
s_add_u32 s{S_DST}, s{S_DST}, s{S_T3}
s_cmp_eq_u32 s{S_T1}, 3
s_cselect_b32 s{S_T3}, 7, 26
s_lshl_b32 s{S_T3}, s{S_T3}, 10
s_add_u32 s{S_DST}, s{S_DST}, s{S_T3}
v_mul_u32_u24 v{tb+3}, 208, v{tb+2}
v_add3_u32 v{tb+3}, v{tb+3}, v{tb+1}, s{stg}
s_mul_i32 s{S_T0}, s{S_T0}, 832
s_lshl_b32 s{S_T1}, s{S_TYPE}, 6
s_add_u32 s{S_T0}, s{S_T0}, s{S_T1}
v_lshlrev_b32 v{tb+2}, 1, v{tb+2}
{lin(SRD_U)}
buffer_load_ushort v{tb+4}, v{tb+2}, s[{SRD_B}:{SRD_B+3}], s{S_T0} offen{fl}
{lab}_ldone:
"""
    return t


def pack_stores(lab, pkd, tb=204, LANE=LANE):
    t = f"""
s_cmp_eq_u32 s{S_TYPE}, 25
s_cbranch_scc1 {lab}_r3
"""
    for i in range(7): t += f"ds_read_b128 v[{pkd+4*i}:{pkd+4*i+3}], v{tb+3} offset:{32*i}\n"
    t += f"s_branch {lab}_rdone\n{lab}_r3:\n"
    for i in range(7): t += f"ds_read_b128 v[{pkd+4*i}:{pkd+4*i+3}], v{tb+3} offset:{128*i}\n"
    t += f"""
{lab}_rdone:
s_add_u32 s{S_T0}, s{S_DST}, 4096
s_waitcnt lgkmcnt(0)
"""
    for i in range(4):
        t += f"buffer_store_dwordx4 v[{pkd+4*i}:{pkd+4*i+3}], v{V_L16}, s[{SRD_W}:{SRD_W+3}], s{S_DST} offen offset:{i*1024} sc1\n"
    t += f"""
buffer_store_dwordx4 v[{pkd+16}:{pkd+19}], v{V_L16}, s[{SRD_W}:{SRD_W+3}], s{S_T0} offen sc1
s_cmp_eq_u32 s{S_TYPE}, 16
s_cbranch_scc1 {lab}_sdone
s_cmp_eq_u32 s{S_TYPE}, 20
s_cbranch_scc1 {lab}_sdone
s_cmp_eq_u32 s{S_TYPE}, 24
s_cbranch_scc1 {lab}_sdone
buffer_store_dwordx4 v[{pkd+20}:{pkd+23}], v{V_L16}, s[{SRD_W}:{SRD_W+3}], s{S_T0} offen offset:1024 sc1
s_cmp_lt_u32 s{S_TYPE}, 13
s_cbranch_scc1 {lab}_su
buffer_store_dwordx4 v[{pkd+24}:{pkd+27}], v{V_L16}, s[{SRD_W}:{SRD_W+3}], s{S_T0} offen offset:2048 sc1
s_branch {lab}_sdone
{lab}_su:
v_mov_b32 v{tb+1}, {OOB}
v_cmp_gt_u32 vcc, 32, v{LANE}
v_add_u32 v{tb+2}, 128, v{V_L16}
v_lshlrev_b32 v{tb+0}, 2, v{LANE}
v_cndmask_b32 v{tb+2}, v{tb+1}, v{tb+2}, vcc
v_cndmask_b32 v{tb+0}, v{tb+1}, v{tb+0}, vcc
buffer_store_dwordx4 v[{pkd+24}:{pkd+27}], v{tb+2}, s[{SRD_W}:{SRD_W+3}], s{S_T0} offen offset:2048 sc1
buffer_store_dword v{tb+4}, v{tb+0}, s[{SRD_W}:{SRD_W+3}], s{S_T0} offen offset:2048 sc1
{lab}_sdone:
"""
    return t


def epilogue_ops(ro, u, l, cfg):
    b, jj = divmod(u, ro.nj)
    groups = []
    sreg = ro.sreg(u); xp, xr = ro.x0reg(u, cfg)
    k = 0
    for h in range(2):
        ops = []
        tc = TC[h]
        for q in range(4):
            tm = TM + 2 * (k & 1); k += 1
            for e in range(2):
                i = 8 * h + 2 * q + e
                if xp == "a":
                    ops.append(V(f"v_accvgpr_read_b32 v{tm+e}, a{xr+i}", [f"a{xr+i}"], [f"v{tm+e}"]))
            for e in range(2):
                i = 8 * h + 2 * q + e
                src = f"v{tm+e}" if xp == "a" else f"v{xr+i}"
                ops.append(V(f"v_mul_f32 v{tm+e}, {src}, v{sreg+i}", [src, f"v{sreg+i}"], [f"v{tm+e}"]))
            ops.append(V(f"v_cvt_pk_bf16_f32 v{tc+q}, v{tm}, v{tm+1}", [f"v{tm}", f"v{tm+1}"], [f"v{tc+q}"]))
        areg, imm = xw_addr(ro, b, jj, h)
        o = ds_write128(areg, ("v", tc), imm, tag=("xw", l + 1, b, jj, h))
        o.note = ("W", ("x", b), l + 1)
        groups.append((ops, o))
    return groups


def xw_addr(ro, b, jj, h):
    if ro.M: return V_XW + 2 * (jj & 1) + h, b * 26624 + (jj >> 1) * 1024
    j = 9 + jj
    return V_XR + 2 * (j & 1) + h, b * 26624 + (j >> 1) * 1024


def unpack_ops(ro, u, cfg):
    b, jj = divmod(u, ro.nj)
    xp, xr = ro.x0reg(u, cfg)
    rds, ops = [], []
    for h in range(2):
        areg, imm = xw_addr(ro, b, jj, h)
        src = xr + 8 * h + 4 if xp == "v" else 248 + 4 * h
        o = ds_read128(("v", src), areg, imm); o.note = ("R", ("x", b), 0)
        rds.append(o)
        for q in range(4):
            p = src + q
            lo, hi = xr + 8 * h + 2 * q, xr + 8 * h + 2 * q + 1
            if xp == "v":
                ops.append(V(f"v_lshlrev_b32 v{lo}, 16, v{p}", [f"v{p}"], [f"v{lo}"]))
                ops.append(V(f"v_and_b32 v{hi}, 0xffff0000, v{p}", [f"v{p}"], [f"v{hi}"]))
            else:
                ops.append(V(f"v_lshlrev_b32 v11, 16, v{p}", [f"v{p}"], ["v11"]))
                ops.append(V(f"v_and_b32 v{p}, 0xffff0000, v{p}", [f"v{p}"], [f"v{p}"]))
                ops.append(V(f"v_accvgpr_write_b32 a{lo}, v11", ["v11"], [f"a{lo}"]))
                ops.append(V(f"v_accvgpr_write_b32 a{hi}, v{p}", [f"v{p}"], [f"a{hi}"]))
    return rds, ops


def build_main(ro, cfg):
    S = Slots2()
    M = ro.M; nj = ro.nj
    rn = ro.name
    C = lambda k, d=None: cfg.get(k + "_" + rn, cfg.get(k, d))
    capf = (lambda d: C("cap32", 20) if d == 32 else C("cap16", 8))
    lay = []; wuse = []; xreads = []
    poolreg = lambda i: ("a", 4 * i)
    for l in range(NL):
        d = {}
        first = {}; last = {}
        xc = 0
        for b in range(2):
            d[("g1s", b)] = len(S.mf)
            if M:
                for k in range(26):
                    xs = ("a", ro.XST + 4 * (xc % ro.NXST)); xc += 1
                    rdop = ds_read128(xs, V_XR + (k & 3), b * 26624 + (k >> 2) * 1024)
                    rdop.note = ("R", ("x", b), l)
                    sl = S.add(mfma32(("v", ro.ACC + 16 * b), poolreg(k), xs, c=(0 if k == 0 else None)))
                    xreads.append((sl, rdop, l, b))
                    first.setdefault(k, sl); last[k] = sl
            else:
                for uu in range(13):
                    for be in range(2):
                        xs = ("a", ro.XST + 4 * (xc % ro.NXST)); xc += 1
                        rdop = ds_read128(xs, V_XW + (uu & 1), (2 * b + be) * 13312 + (uu >> 1) * 1024)
                        rdop.note = ("R", ("x", b), l)
                        sl = S.add(mfma16(("v", ro.ACC + 8 * be + 4 * (uu & 1)), poolreg(uu >> 1), xs, c=(0 if uu < 2 else None)))
                        xreads.append((sl, rdop, l, b))
                        first.setdefault(uu >> 1, sl); last[uu >> 1] = sl
            d[("g1e", b)] = len(S.mf) - 1
        for b in range(2):
            d[("g2s", b)] = len(S.mf)
            for jj in range(nj):
                u = b * nj + jj
                for kk in range(7):
                    i = ro.nV + jj * 7 + kk
                    sl = S.add(mfma32(("v", ro.sreg(u)), poolreg(i), ("a", ro.HFR + 4 * kk)))
                    first.setdefault(i, sl); last[i] = sl
                d[("ue", u)] = sl
            d[("g2e", b)] = len(S.mf) - 1
        wuse.append([(first[i], last[i]) for i in range(ro.nW)])
        lay.append(d)
    PER = len(S.mf) // NL
    total = len(S.mf)
    if not M:
        for l in range(NL):
            S.gap[lay[l][("g1s", 1)]] = C("gap1", 120)
            S.gap[lay[l][("g2s", 0)]] = C("gap2", 264)
    tm = S.times()
    for l in range(NL):
        d = lay[l]
        d["bx1"] = d[("g1s", 0)] + C("bx1"); d["bh0"] = d[("g1s", 1)] + C("bh0")
        d["bh1"] = d[("g2s", 0)] + C("bh1"); d["bx0"] = d[("g2s", 1)] + C("bx0")
    pre_loads = []
    adv_done = set()
    def wload(L, i):
        off, vreg = ro.wfrag(i)
        win = off >> 12
        so = f"s{S_WIN + win}" if win else "0"
        return buf_load4(poolreg(i), vreg, SRD_W, so, off & 4095, flags=cfg.get("wflags", " sc1"))
    def advance():
        return [salu(f"s_add_u32 s{SRD_W}, s{SRD_W}, {LP}"), salu(f"s_addc_u32 s{SRD_W+1}, s{SRD_W+1}, 0"),
                salu(f"s_sub_u32 s{SRD_W+2}, s{SRD_W+2}, {LP}")]
    period_t = tm[lay[1][("g1s", 0)]] - tm[lay[0][("g1s", 0)]]
    pace = period_t / ro.nW
    import bisect
    minslack = 10**9
    seq = []
    for L in range(0, NL + 1):
        if M: t0 = (L - 1) * period_t + C("wt0", 27) * 32
        else: t0 = (L - 1) * period_t + tm[lay[0][("g2s", 0)]] + C("wt0", 300)
        for i in range(ro.nW):
            seq.append((t0 + i * pace, L, i))
    prevL = 0
    for t, L, i in seq:
        if L == 0 and i < ro.nV: continue
        sl = bisect.bisect_right(tm, t) - 1 if t >= 0 else -1
        if L >= 1:
            sl = max(sl, wuse[L - 1][i][1])
        if L == NL and sl >= lay[NL - 1][("g2s", 0)]: continue
        if L == 0: sl = max(sl, lay[0]["bx1"] + 1)
        ops = []
        if L != prevL:
            ops += advance(); prevL = L
        ops.append(wload(L, i))
        if sl < 0:
            pre_loads += ops
        else:
            for o in ops: S.at(sl, o)
            if L < NL: minslack = min(minslack, tm[wuse[L][i][0]] - tm[sl])
    S.minslack = minslack
    DX = C("dx", 6)
    for sl, op, l, b in xreads:
        t = sl - DX
        if b == 1: t = max(t, lay[l]["bx1"] + 1)
        if b == 0 and l > 0: t = max(t, lay[l - 1]["bx0"] + 1)
        assert t < sl, ("x read", rn, l, b, t, sl)
        S.at(t, op)
    for l in range(NL):
        d = lay[l]
        for b in range(2):
            for kk in range(7):
                op = ds_read128(("a", ro.HFR + 4 * kk), V_L16, HB + (b * 7 + kk) * 1024)
                op.note = ("R", ("h", b), l)
                use = d[("g2s", b)] + kk
                if b == 0: t = max(use - C("dh", 6), d["bh0"] + 1)
                else: t = max(d[("ue", nj - 1)] - 6 + kk, d["bh1"] + 1)
                assert t < use, ("h read", rn, l, b, kk, t, use)
                S.at(t, op)
    for l in range(NL):
        d = lay[l]
        for b in range(2):
            ops = []
            if M:
                acc = ro.ACC + 16 * b
                for h in range(2):
                    a0 = acc + 8 * h
                    for q in range(4):
                        ops.append(V(f"v_cvt_pk_bf16_f32 v{a0+q}, v{a0+2*q}, v{a0+2*q+1}",
                                     [f"v{a0+2*q}", f"v{a0+2*q+1}"], [f"v{a0+q}"]))
                    o = ds_write128(V_HW, ("v", a0), (b * 7 + h) * 1024, tag=("hw", l, b, h))
                    o.note = ("W", ("h", b), l); ops.append(o)
                last = S.spread2(ops, d[("g1e", b)] + C("hlag", 2), (lambda dd: C("caph", 28)))
            else:
                for be in range(2):
                    E = ro.ACC + 8 * be; O = E + 4
                    ops.append(V(f"v_add_f32 v{E}, v{E}, v{O+2}", [f"v{E}", f"v{O+2}"], [f"v{E}"]))
                    ops.append(V(f"v_add_f32 v{E+1}, v{E+1}, v{O+3}", [f"v{E+1}", f"v{O+3}"], [f"v{E+1}"]))
                    ops.append(V(f"v_cvt_pk_bf16_f32 v{O}, v{E}, v{E+1}", [f"v{E}", f"v{E+1}"], [f"v{O}"]))
                    o = ds_write32(V_HW, O, b * 7168 + be * 256, tag=("hw", l, b, be))
                    o.note = ("W", ("h", b), l); ops.append(o)
                d[("hops", b)] = ops
                last = d[("g1e", b)] + (0 if b == 0 else C("hlag", 1))
            bs = d["bh0"] if b == 0 else d["bh1"]
            assert last <= bs, ("h write after barrier", rn, l, b, last, bs)
            d[("hneed", b)] = [("hw", l, b, 0), ("hw", l, b, 1)]
            d[("hlast", b)] = last
    chain = -10**9; wslot = []
    unp_r, unp = {}, {}
    for u in range(2 * nj): unp_r[u], unp[u] = unpack_ops(ro, u, cfg)
    for l in range(NL):
        d = lay[l]
        items = []
        for u in range(2 * nj): items.append((d[("ue", u)] + C("elag", 2), "e", u))
        items.sort(key=lambda x: x[0])
        for start, kind, a in items:
            u = a
            lastw = -10**9
            for ops, w in epilogue_ops(ro, u, l, cfg):
                st_ = max(chain, start, wslot[-2] if len(wslot) >= 2 else -10**9)
                chain = S.spread2(ops, st_, capf)
                ws_ = S.spread2([w], max(chain, wslot[-1] if wslot else -10**9), capf)
                wslot.append(ws_); lastw = ws_
            d[("elast", u)] = lastw
    d = lay[0]; uch = -10**9
    for u in range(2 * nj):
        st_ = max(uch, d[("g1s", 0)] + C("unp0", 0) if u < nj else d["bx1"] + 1)
        for o in unp_r[u]: S.at(st_, o)
        uch = S.spread2(unp[u], st_ + C("unplag", 3), (lambda dd: C("capu32", 20) if dd == 32 else C("capu16", 32)))
        assert uch < d[("ue", u)] + C("elag", 2), ("unpack too late", rn, u, uch, d[("ue", u)])
    if not M:
        for l in range(NL):
            for b in range(2):
                for o in lay[l][("hops", b)]: S.at(lay[l][("hlast", b)], o)
    st = cfg.get("stamps", 0)
    def bar(slot, needs, l, sid):
        inbody = (1 <= l <= NL - 1) if sid in (0, 1) else (l <= NL - 2)
        k = {2: 3, 3: 5, 0: 7, 1: 9}[sid]
        if st == 2 and inbody: S.at(slot, stamp(k))
        S.at(slot, barrier(need=needs))
        if st == 2 and inbody: S.at(slot, stamp(k + 1))
    for l in range(NL):
        d = lay[l]
        if l > 0:
            needs = [("xw", l, 1, jj, h) for jj in range(nj) for h in range(2)]
            el = max(lay[l - 1][("elast", u)] for u in range(nj, 2 * nj))
            assert el <= d["bx1"], ("x1 write after barrier", rn, l, el, d["bx1"])
        else:
            needs = [("xdma", 1)] if M else []
            if not M:
                for o in poll_block(cfg["kname"], cfg): S.at(d["bx1"], o)
        bar(d["bx1"], needs, l, 0)
        bar(d["bh0"], d[("hneed", 0)], l, 1)
        bar(d["bh1"], d[("hneed", 1)], l, 2)
        needs = [("xw", l + 1, 0, jj, h) for jj in range(nj) for h in range(2)]
        el = max(d[("elast", u)] for u in range(nj))
        if l == NL - 1: d["bx0"] = max(el, d[("g2s", 1)] + C("bx0t", 0))
        assert el <= d["bx0"], ("x0 write after barrier", rn, l, el, d["bx0"])
        bar(d["bx0"], needs, l, 3)
    d = lay[NL - 1]
    ofl = cfg.get("oflags", " nt")
    def out_ops(b, regs):
        rds, sts = [], []
        k = 0
        for P in range(2):
            for jj in range(nj):
                r = ("a", regs + 4 * k); k += 1
                o = ds_read128(r, ro.V_OB, b * 26624 + P * 13312 + jj * 1024); o.note = ("R", ("x", b), NL)
                rds.append(o)
                sts.append(buf_store4(r, V_XG, SRD_O, f"s{S_OS + 2*b + P}", jj * 128, flags=ofl))
        return rds, sts
    rds, sts = out_ops(0, ro.XST)
    s0 = d["bx0"] + 1
    for k, o in enumerate(rds): S.at(s0 + k // 2, o)
    for k, o in enumerate(sts): S.at(s0 + 3 + k, o)
    tail = []
    needs = [("xw", NL, 1, jj, h) for jj in range(nj) for h in range(2)]
    lastslot = max(max(S.fill), total - 1)
    S.at(lastslot, barrier(need=needs))
    rds, sts = out_ops(1, 0 if M else 28)
    for o in rds + sts: S.at(lastslot, o)
    if st == 1:
        S.before(lay[0][("g2s", 0)], stamp(4))
    for l in range(NL): S.before(lay[l][("g2s", 0)], mark(l))
    if st == 1:
        S.before(lay[NL - 1][("g2s", 0)], stamp(5)); S.before(lay[NL - 1][("g2s", 0)], stamp(7, True))
    if st == 2:
        for l in range(NL - 1): S.before(lay[l][("g2s", 0)], stamp(2))
    if st == 4:
        S.pre[lay[0][("g2s", 0)]] = [stamp(3, True), stamp(8)] + S.pre[lay[0][("g2s", 0)]]
        S.before(lay[NL - 1][("g2s", 0)], stamp(4, True)); S.before(lay[NL - 1][("g2s", 0)], stamp(9))
        S.at(len(S.mf) - 1, stamp(5, True))
    for l in range(NL - 1):
        pass
    S.lay = lay; S.pre_loads = pre_loads
    return S


def common_prologue(kname, cfg):
    st = cfg.get("stamps", 0)
    t = ""
    t += f"""
s_load_dwordx4 s[4:7], s[0:1], 0
s_load_dwordx4 s[8:11], s[0:1], 16
s_load_dwordx4 s[12:15], s[0:1], 32
s_load_dwordx2 s[16:17], s[0:1], 48
s_cmp_ge_u32 s2, 256
s_cbranch_scc1 {kname}_done
v_lshrrev_b32 v8, 6, v0
v_and_b32 v{LANE}, 63, v0
v_readfirstlane_b32 s{S_WAVE}, v8
v_lshlrev_b32 v{V_L16}, 4, v{LANE}
{xg_pattern(V_XG, LANE, 8)}
s_mul_i32 s{S_T5}, s2, 53248
s_waitcnt lgkmcnt(0)
{srd(SRD_X, S_X0, X_BYTES)}
{srd(SRD_V, S_V, W_BYTES)}
s_cmp_eq_u32 s{S_WAVE}, 3
s_cbranch_scc0 {kname}_M
"""
    P = []
    if st: P += [stamp(0), stamp(1, True)]
    return P + T(t)


def common_srds():
    return (srd(SRD_O, S_OUT, X_BYTES) + srd(SRD_W, S_WS, PK_BYTES) + srd(SRD_U, S_U, W_BYTES) +
            srd(SRD_B, S_BS, B_BYTES) + srd(SRD_D, S_DBG, 256))


def late_consts(ro):
    t = ""
    for i in range(1, 12): t += f"s_mov_b32 s{S_WIN+i}, {4096*i}\n"
    if ro.M:
        t += f"""
s_mul_i32 s{S_T0}, s{S_WAVE}, {M_BLK}
s_mul_i32 s{S_T1}, s{S_WAVE}, 384
"""
    else:
        t += f"""
s_mov_b32 s{S_T0}, {3*M_BLK}
s_mov_b32 s{S_T1}, {9*128}
"""
    t += f"""
s_add_u32 s{SRD_W}, s{S_WS}, s{S_T0}
s_addc_u32 s{SRD_W+1}, s{S_WS+1}, 0
s_mov_b32 s{SRD_W+2}, {NL*LP}
s_add_u32 s{S_T1}, s{S_T1}, s{S_T5}
s_mov_b32 s{S_OS}, s{S_T1}
s_add_u32 s{S_OS+1}, s{S_T1}, 13312
s_add_u32 s{S_OS+2}, s{S_T1}, 26624
s_add_u32 s{S_OS+3}, s{S_T1}, 39936
s_mov_b32 s{S_CNT}, 0
"""
    return t


def w6_reg():
    return f"""
v_lshlrev_b32 v246, 2, v{LANE}
v_subrev_u32 v246, 128, v246
v_add_u32 v247, 128, v{V_L16}
v_cmp_gt_u32 vcc, 32, v{LANE}
s_nop 1
v_cndmask_b32 v{V_W6}, v246, v247, vcc
"""


S_STG = 75
NXB1 = 9


def prologue_M(ro, S, kname, cfg):
    st = cfg.get("stamps", 0)
    xf = cfg.get("xflags", " nt")
    ST3 = lambda k: (f"s_memrealtime s[{STAMP0+2*k}:{STAMP0+2*k+1}]" if st == 3 else "")
    t = f"{kname}_M:\n" + common_srds()
    t += f"""
s_cmp_lt_u32 s2, {NPROD}
s_cbranch_scc0 {kname}_nopack1
s_mul_i32 s{S_G}, s2, 3
s_add_u32 s{S_G}, s{S_G}, s{S_WAVE}
s_mul_i32 s{S_STG}, s{S_WAVE}, {NXB1*1024}
s_add_u32 s{S_STG}, s{S_STG}, {XB + 26624}
{pack_loads(kname + "_p", cfg, S_STG)}
{kname}_nopack1:
s_barrier
{ST3(2)}
"""
    t += f"s_mul_i32 s{S_T0}, s{S_WAVE}, 26624\ns_add_u32 s{S_T1}, s{S_T0}, 13312\n"
    nd = 0
    for pp in range(2):
        for j in range(13):
            t += f"s_add_u32 m0, s{S_T0+pp}, {VB + 896*j}\ns_nop 0\n"
            t += f"buffer_load_dwordx4 v{V_XG}, s[{SRD_V}:{SRD_V+3}], s{S_T0+pp} offen offset:{j*128} lds\n"
            nd += 1
    for i in range(5):
        t += f"""s_add_u32 s{S_T2}, s{S_WAVE}, {3*i}
s_min_u32 s{S_T2}, s{S_T2}, 12
s_lshl_b32 s{S_T3}, s{S_T2}, 10
s_add_u32 m0, s{S_T3}, {VB + 6*13312}
s_lshl_b32 s{S_T3}, s{S_T2}, 7
s_add_u32 s{S_T3}, s{S_T3}, {6*13312}
buffer_load_dwordx4 v{V_XG}, s[{SRD_V}:{SRD_V+3}], s{S_T3} offen lds
"""
        nd += 1
    t += f"""
s_cmp_lt_u32 s2, {NPROD}
s_cbranch_scc0 {kname}_nopack2
s_waitcnt vmcnt({nd})
{ST3(3)}
{pack_stores(kname + "_p", PKD)}
{kname}_nopack2:
"""
    for i in range(NXB1):
        t += f"""s_mul_i32 s{S_T0}, s{S_WAVE}, {NXB1}
s_add_u32 s{S_T0}, s{S_T0}, {i}
s_min_u32 s{S_T0}, s{S_T0}, 25
s_lshl_b32 s{S_T1}, s{S_T0}, 10
s_add_u32 m0, s{S_T1}, {XB + 26624}
s_lshl_b32 s{S_T1}, s{S_T0}, 7
s_cmp_ge_u32 s{S_T0}, 13
s_cselect_b32 s{S_T2}, {13312 - 13*128}, 0
s_add_u32 s{S_T1}, s{S_T1}, s{S_T2}
s_add_u32 s{S_T1}, s{S_T1}, s{S_T5}
s_add_u32 s{S_T1}, s{S_T1}, 26624
buffer_load_dwordx4 v{V_XG}, s[{SRD_X}:{SRD_X+3}], s{S_T1} offen{xf} lds
"""
    t += f"""
s_cmp_lt_u32 s2, {NPROD}
s_cbranch_scc0 {kname}_nopack3
s_waitcnt vmcnt({NXB1})
{ST3(4)}
s_barrier
{ST3(5)}
{kname}_nopack3:
"""
    t += f"""
v_and_b32 v240, 31, v{LANE}
v_lshrrev_b32 v241, 5, v{LANE}
{xr_bases(V_XR, 240, 241, XB, 242)}
s_mul_i32 s{S_T0}, s{S_WAVE}, 3
s_lshr_b32 s{S_T1}, s{S_T0}, 1
s_lshl_b32 s{S_T1}, s{S_T1}, 10
s_add_u32 s{S_T2}, s{S_T0}, 1
s_lshr_b32 s{S_T2}, s{S_T2}, 1
s_lshl_b32 s{S_T2}, s{S_T2}, 10
s_and_b32 s{S_T3}, s{S_WAVE}, 1
s_cmp_eq_u32 s{S_T3}, 0
s_cbranch_scc0 {kname}_odd
v_add_u32 v{V_XW}, s{S_T1}, v{V_XR}
v_add_u32 v{V_XW+1}, s{S_T1}, v{V_XR+1}
v_add_u32 v{V_XW+2}, s{S_T2}, v{V_XR+2}
v_add_u32 v{V_XW+3}, s{S_T2}, v{V_XR+3}
s_branch {kname}_oddd
{kname}_odd:
v_add_u32 v{V_XW}, s{S_T1}, v{V_XR+2}
v_add_u32 v{V_XW+1}, s{S_T1}, v{V_XR+3}
v_add_u32 v{V_XW+2}, s{S_T2}, v{V_XR}
v_add_u32 v{V_XW+3}, s{S_T2}, v{V_XR+1}
{kname}_oddd:
s_lshl_b32 s{S_T1}, s{S_WAVE}, 11
v_add_u32 v{V_HW}, s{S_T1}, v{V_L16}
s_mul_i32 s{S_T1}, s{S_WAVE}, 3072
s_add_u32 s{S_T1}, s{S_T1}, {XB}
v_add_u32 v{ro.V_OB}, s{S_T1}, v{V_L16}
{w6_reg()}
{pi_m(239, 240, 242)}
s_mul_i32 s{S_T1}, s{S_WAVE}, 26624
s_add_u32 s{S_T1}, s{S_T1}, {VB}
{xr_bases(232, 239, 241, f"s{S_T1}", 242)}
"""
    for r in range(ro.S0, ro.S0 + 96): t += f"v_mov_b32 v{r}, 1.0\n"
    t += late_consts(ro)
    t += f"s_waitcnt vmcnt({NXB1})\n" + ST3(6) + "\n"
    for k in range(26):
        t += f"ds_read_b128 a[{4*k}:{4*k+3}], v{232 + (k & 3)} offset:{(k >> 2)*1024}\n"
        if k == 13: t += "s_waitcnt lgkmcnt(0)\n"
    t += "s_waitcnt lgkmcnt(0)\n"
    P = T(t)
    if st == 1: P.append(stamp(2))
    P.append(barrier())
    if st == 1: P += [stamp(3), stamp(6, True)]
    if st == 3: P += [stamp(9, True)]
    if st == 4: P += [stamp(2, True)]
    return P


def prologue_R(ro, S, kname, cfg):
    st = cfg.get("stamps", 0)
    xf = cfg.get("xflags", " nt")
    ST3 = lambda k: (f"s_memrealtime s[{STAMP0+2*k}:{STAMP0+2*k+1}]" if st == 3 else "")
    t = ""
    for P_ in range(2):
        t += f"s_add_u32 s{S_T0}, s{S_T5}, {P_*13312}\n"
        for j in range(13):
            t += f"s_mov_b32 m0, {XB + 13312*P_ + 896*j}\ns_nop 0\n"
            t += f"buffer_load_dwordx4 v{V_XG}, s[{SRD_X}:{SRD_X+3}], s{S_T0} offen offset:{j*128}{xf} lds\n"
    t += "s_barrier\n" + ST3(2) + "\n" + common_srds()
    t += f"""
v_and_b32 v240, 31, v{LANE}
v_lshrrev_b32 v241, 5, v{LANE}
{xr_bases(V_XR, 240, 241, XB, 242)}
v_and_b32 v240, 15, v{LANE}
v_lshrrev_b32 v241, 4, v{LANE}
{x16_base(V_XW, 240, 241, 0, XB, 242)}
{x16_base(V_XW+1, 240, 241, 1, XB, 242)}
v_lshlrev_b32 v242, 4, v240
v_lshlrev_b32 v243, 2, v241
v_add3_u32 v{V_HW}, v242, v243, 0
v_add_u32 v{V_HW}, {HB + 6*1024}, v{V_HW}
v_add_u32 v{ro.V_OB}, {XB + 9*1024}, v{V_L16}
{w6_reg()}
v_lshrrev_b32 v238, 2, v240
v_lshlrev_b32 v238, 1, v238
v_and_b32 v239, 1, v240
v_add_u32 v238, v238, v239
v_lshrrev_b32 v239, 1, v240
v_and_b32 v239, 1, v239
{x16_base(232, 238, 241, "v239", VB + 6*13312, 242)}
v_lshrrev_b32 v238, 5, v{LANE}
v_mul_u32_u24 v238, 7168, v238
v_and_b32 v239, 31, v{LANE}
v_lshlrev_b32 v239, 4, v239
v_add3_u32 v238, v238, v239, 0
v_add_u32 v238, {HB + 6*1024 + 512}, v238
v_mov_b32 v244, 0x3f80
v_mov_b32 v245, 0
v_mov_b32 v246, 0
v_mov_b32 v247, 0
ds_write_b128 v238, v[244:247]
"""
    for r in range(ro.S0, ro.S0 + 128): t += f"v_mov_b32 v{r}, 1.0\n"
    t += late_consts(ro)
    t += f"""
s_cmp_lt_u32 s2, {NPROD}
s_cbranch_scc0 {kname}_Rnp
s_barrier
v_mov_b32 v204, 1
v_mov_b32 v205, 0
s_mov_b64 exec, 1
buffer_atomic_add v204, v205, s[{SRD_D}:{SRD_D+3}], 0 offen sc0
s_waitcnt vmcnt(0)
{ST3(3)}
v_cmp_eq_u32 vcc, {NPROD - 1}, v204
s_cbranch_vccz {kname}_Rnl
v_mov_b32 v204, 1
buffer_store_dword v204, v205, s[{SRD_D}:{SRD_D+3}], 0 offen offset:128 sc1
{kname}_Rnl:
s_mov_b64 exec, -1
{kname}_Rnp:
s_waitcnt vmcnt(0) lgkmcnt(0)
{ST3(6)}
"""
    P = T(t)
    if st == 1: P.append(stamp(2))
    P.append(barrier())
    if st == 1: P += [stamp(3), stamp(6, True)]
    if st == 3: P += [stamp(9, True)]
    for p in range(7):
        P.append(ds_read128(("a", 4 * p), 232, p * 1024))
    return P


def poll_block(kname, cfg):
    st = cfg.get("stamps", 0)
    t = f"""
v_mov_b32 v237, 0
s_mov_b32 s{S_T0}, 0
s_mov_b64 exec, 1
{kname}_poll:
buffer_load_dword v236, v237, s[{SRD_D}:{SRD_D+3}], 0 offen offset:128 sc1
s_waitcnt vmcnt(0)
v_cmp_eq_u32 vcc, 0, v236
s_cbranch_vccz {kname}_pollok
s_add_u32 s{S_T0}, s{S_T0}, 1
s_cmp_lt_u32 s{S_T0}, {cfg.get("polls", 4000)}
s_cbranch_scc1 {kname}_poll
; the producers never showed up : pack everything here
s_mov_b64 exec, -1
s_mov_b32 s{SRD_W}, s{S_WS}
s_mov_b32 s{SRD_W+1}, s{S_WS+1}
s_mov_b32 s{SRD_W+2}, {PK_BYTES}
s_mov_b32 s{S_G}, 0
s_mov_b32 s{S_STG}, {VB}
v_lshrrev_b32 v52, 4, v{V_L16}
{kname}_fb:
{pack_loads(kname + "_f", cfg, S_STG, 40, 52)}
s_waitcnt vmcnt(0)
{pack_stores(kname + "_f", 12, 40, 52)}
s_waitcnt vmcnt(0)
s_add_u32 s{S_G}, s{S_G}, 1
s_cmp_lt_u32 s{S_G}, {3*NPROD}
s_cbranch_scc1 {kname}_fb
s_add_u32 s{SRD_W}, s{S_WS}, {3*M_BLK}
s_addc_u32 s{SRD_W+1}, s{S_WS+1}, 0
s_mov_b32 s{SRD_W+2}, {NL*LP}
{chr(10).join(f"v_mov_b32 v{r}, 1.0" for r in range(12, 53))}
{kname}_pollok:
s_mov_b64 exec, -1
{f"s_memrealtime s[{STAMP0+14}:{STAMP0+15}]" if st in (3, 4) else ""}
{"s_mov_b32 s%d, s%d" % (STAMP0 + 16, S_T0) if st == 3 else ""}
"""
    P = T(t)
    cold = False
    for I in P:
        I.cost = 0
        if I.kind == "comment" and "never showed up" in I.t: cold = True
        if I.kind == "label" and I.t.endswith("_pollok:"): cold = False
        if cold and I.kind == "raw": I.kind = "cold"
    return P


def check_lds_protocol(progs):
    acc = []; nb = {}
    for name, prog in progs.items():
        ep = 0; q = []; recs = []
        for I in prog:
            if I.kind == "bar": ep += 1
            elif is_wait(I):
                v, n = parse_wait(I)
                if n is not None:
                    while len(q) > n:
                        r = q.pop(0)
                        if r is not None: r[5] = ep
            elif I.kind in ("dsr", "dsw"):
                r = None
                if isinstance(I.note, tuple):
                    r = [name, I.note[0], I.note[1], I.note[2], ep, None]; recs.append(r)
                q.append(r)
        for r in recs:
            if r[5] is None: r[5] = ep + 1000
        acc += recs; nb[name] = ep
    assert len(set(nb.values())) == 1, nb
    from collections import defaultdict
    W = defaultdict(list); Rd = defaultdict(list)
    for r in acc: (W if r[1] == "W" else Rd)[(r[2], r[3])].append(r)
    bad = 0
    for key, ws in W.items():
        wd = max(w[5] for w in ws)
        for r in Rd.get(key, []):
            if r[4] < wd + 1:
                bad += 1; print("RAW violation", key, r, "write done epoch", wd)
        reg, gen = key
        prev = Rd.get((reg, gen - 1), [])
        if prev:
            rdn = max(r[5] for r in prev); wi = min(w[4] for w in ws)
            if wi < rdn + 1:
                bad += 1; print("WAR violation", key, "reads done epoch", rdn, "write issue epoch", wi)
    for b in range(2):
        for r in Rd[(("x", b), 0)]:
            if r[4] < 1 + b: bad += 1; print("x0 read too early", r)
    assert bad == 0
    return nb


def main_kernel(kname, cfg):
    cfg = dict(cfg, kname=kname)
    st = cfg.get("stamps", 0)
    flat = {}
    texts = {}
    for rn in ("M", "R"):
        ro = Role(rn)
        S = build_main(ro, cfg)
        if st == 1:
            for o in (stamp(12),): S.at(len(S.mf) - 1, o)
        pro = prologue_M(ro, S, kname, cfg) if ro.M else prologue_R(ro, S, kname, cfg)
        k = max(i for i, I in enumerate(pro) if I.kind == "bar")
        head_raw, ir0 = pro[:k], pro[k:]
        lin = S.linear()
        xd = []
        if ro.M:
            xd = [Ins("; x(b1) dma in flight", "vml", tag=("xdma", 1))] * NXB1
        prog = xd + ir0 + S.pre_loads + lin
        prog, stt = insert_waits2(prog, vm_win=cfg.get("vm_win", 8), lg_win=cfg.get("lg_win", 1))
        prog, nn = insert_hazard_nops(prog)
        marks = [i for i, I in enumerate(prog) if I.kind == "mark"]
        assert len(marks) == NL
        head = prog[:marks[0]]
        bodies = [prog[marks[l] + 1:marks[l + 1]] for l in range(NL - 1)]
        tail = prog[marks[NL - 1] + 1:]
        bodies = merge_segments(bodies)
        loopctl = [salu(f"s_add_u32 s{S_CNT}, s{S_CNT}, 1"), salu(f"s_cmp_lt_u32 s{S_CNT}, {NL-1}")]
        full = head[:]
        for bd in bodies: full += bd + loopctl
        full += tail
        verify_waits(full)
        chk, n2 = insert_hazard_nops([I for I in full])
        assert n2 == 0, ("hazard nops still needed", n2)
        flat[rn] = full
        head = [I for I in head if not I.t.startswith("; x(b1)")]
        lab = f"{kname}_loop{rn}"
        body = [Ins(lab + ":", "label")] + bodies[0] + ([stamp(12)] if st == 2 else []) + loopctl + [Ins(f"s_cbranch_scc1 {lab}", "raw")]
        end = []
        if st == 4:
            end = T("s_waitcnt vmcnt(0)") + [stamp(6, True)] + stamp_dump4(ro.M)
        elif st:
            end = T("s_waitcnt vmcnt(0)") + ([stamp(10)] if st == 1 else []) + [stamp(11, True)] + stamp_dump(13)
        texts[rn] = emit(head_raw + head + body + tail + end)
        kinds = {}
        for I in bodies[0]: kinds[I.kind] = kinds.get(I.kind, 0) + 1
        print(f"role {rn}: slots {len(S.mf)} minslack {S.minslack} stats {stt} nops {nn} body kinds {kinds}", file=sys.stderr)
        if cfg.get("dump_load"):
            a = S.lay[2][("g1s", 0)]; z = S.lay[3][("g1s", 0)]
            for s in range(a, z):
                print(rn, s - a, S.dur[s], S.load(s), [i.kind for i in S.fill.get(s, [])], file=sys.stderr)
    check_lds_protocol(flat)
    text = [emit(common_prologue(kname, cfg)), texts["R"], "  s_endpgm", texts["M"], f"{kname}_done:\n  s_endpgm"]
    return "\n".join(text)


def kd(name, agpr_off, total, sgpr=102):
    return f""".section .rodata,"a"
.p2align 6
.amdhsa_kernel {name}
  .amdhsa_next_free_vgpr {total}
  .amdhsa_next_free_sgpr {sgpr}
  .amdhsa_accum_offset {agpr_off}
  .amdhsa_group_segment_fixed_size 0
  .amdhsa_kernarg_size 56
  .amdhsa_user_sgpr_count 2
  .amdhsa_user_sgpr_kernarg_segment_ptr 1
  .amdhsa_system_sgpr_workgroup_id_x 1
.end_amdhsa_kernel
.text"""


HEADER = """; Kernarg layout for this problem (56 bytes, ptrs only, base s[0:1]):
"""

DEFAULT = dict(bx1_M=19, bh0_M=6, bh1_M=9, bx0_M=14, bx1_R=12, bh0_R=12, bh1_R=20, bx0_R=19,
               dx_M=6, dx_R=7, cap32_M=20, cap32_R=20, cap16=48)


def generate(cfg):
    K = "standalone__cross_network_dcn_v2__recsys_kernel"
    s = HEADER
    s += f"; @launch grid=(256,1,1) block=(256,1,1) lds={LDS_BYTES}\n"
    s += '.amdgcn_target "amdgcn-amd-amdhsa--gfx950"\n.text\n'
    s += f".globl {K}\n.p2align 8\n.type {K},@function\n{K}:\n{main_kernel(K, cfg)}\n" + kd(K, 256, 512) + "\n"
    return s


if __name__ == "__main__":
    cfg = dict(DEFAULT)
    for arg in sys.argv[2:]:
        k, v = arg.split("=")
        try: v = int(v)
        except ValueError:
            try: v = float(v)
            except ValueError: pass
        cfg[k] = v
    out = sys.argv[1] if len(sys.argv) > 1 else "cur2.s"
    txt = generate(cfg)
    open(out, "w").write(txt)
    print("wrote", out, len(txt), "bytes", file=sys.stderr)
```

```python
import sys
from gen2 import HEADER, kd
K = "standalone__cross_network_dcn_v2__recsys_kernel"
def mk(name, body, lds=161792, vg=512):
    s = HEADER + f"; @launch grid=(256,1,1) block=(256,1,1) lds={lds}\n"
    s += '.amdgcn_target "amdgcn-amd-amdhsa--gfx950"\n.text\n'
    s += f".globl {K}\n.p2align 8\n.type {K},@function\n{K}:\n{body}\n  s_endpgm\n" + kd(K, 256, vg) + "\n"
    open(f"t/{name}.s", "w").write(s)
def copy(lf, sf, spin=0):
    t = """
s_load_dwordx2 s[4:5], s[0:1], 0
s_load_dwordx2 s[12:13], s[0:1], 32
s_cmp_ge_u32 s2, 256
s_cbranch_scc1 done
v_lshrrev_b32 v8, 6, v0
v_and_b32 v1, 63, v0
v_readfirstlane_b32 s48, v8
v_lshlrev_b32 v1, 4, v1
s_mul_i32 s50, s2, 53248
s_mul_i32 s51, s48, 13312
s_add_u32 s50, s50, s51
s_waitcnt lgkmcnt(0)
s_mov_b32 s20, s4
s_mov_b32 s21, s5
s_mov_b32 s22, 13631488
s_mov_b32 s23, 0x20000
s_mov_b32 s24, s12
s_mov_b32 s25, s13
s_mov_b32 s26, 13631488
s_mov_b32 s27, 0x20000
"""
    for i in range(13):
        if i % 4 == 0 and i: t += "s_add_u32 s50, s50, 4096\n"
        t += f"buffer_load_dwordx4 v[{8+4*i}:{11+4*i}], v1, s[20:23], s50 offen offset:{(i%4)*1024}{lf}\n"
    t += "s_sub_u32 s50, s50, 12288\ns_waitcnt vmcnt(0)\n"
    for i in range(13):
        if i % 4 == 0 and i: t += "s_add_u32 s50, s50, 4096\n"
        t += f"buffer_store_dwordx4 v[{8+4*i}:{11+4*i}], v1, s[24:27], s50 offen offset:{(i%4)*1024}{sf}\n"
    t += "s_waitcnt vmcnt(0)\ndone:\n"
    return t
mk("empty", "")
mk("empty_small", "", lds=0, vg=512)
mk("copy_plain", copy("", ""))
mk("copy_nt", copy(" nt", " nt"))
mk("copy_sc1", copy(" nt", " sc1"))
mk("copy_sc01", copy(" nt", " sc0 sc1"))
mk("copy_sc01nt", copy(" nt", " sc0 sc1 nt"))
```
